```python
import torch

def _softmax(x, axis=-1):
    return torch.softmax(x, dim=axis)

def _gelu(x):
    return torch.nn.functional.gelu(x, approximate='tanh')

def _silu(x):
    return torch.nn.functional.silu(x)

def _sigmoid(x):
    return torch.sigmoid(x)

def _layernorm(x, axis=-1, eps=1e-05):
    m = x.mean(dim=axis, keepdim=True)
    v = x.var(dim=axis, keepdim=True, unbiased=False)
    return (x - m) / torch.sqrt(v + eps)

def _scatter_add(tgt, idx, src, axis=0):
    return tgt.clone().index_add_(axis, idx, src)

def _segment_sum(src, seg, n):
    out = torch.zeros((n,) + src.shape[1:], dtype=src.dtype)
    return out.index_add_(0, seg, src)

def _pad(x, pw):
    flat = tuple((v for pair in reversed(pw) for v in pair))
    return torch.nn.functional.pad(x, flat)
kernel_name = 'interleave_layers__memory_aug_recurrent_mem_tr__mixer_s_mlp__prompt'

def setup_inputs():

    _w = lambda a: (lambda t: t.to(torch.bfloat16) if t.is_floating_point() else t)(torch.as_tensor(a))

    def _A_setup():
        B, S, Dm = (1, 2048, 640)
        H, Dh = (32, 192)
        M, seg = (8, 32)
        seg = min(seg, S)
        S = S // seg * seg
        return {'x': _w((lambda *s: torch.randn(*s, dtype=torch.bfloat16) * 0.05)(B, S, Dm)), 'mem0': _w((lambda *s: torch.randn(*s, dtype=torch.bfloat16) * 0.8)(B, M, Dm)), 'Wq': _w((lambda *s: torch.randn(*s, dtype=torch.bfloat16) * 0.8)(Dm, H, Dh) * Dm ** (-0.5)), 'Wk': _w((lambda *s: torch.randn(*s, dtype=torch.bfloat16) * 0.8)(Dm, H, Dh) * Dm ** (-0.5)), 'Wv': _w((lambda *s: torch.randn(*s, dtype=torch.bfloat16) * 0.8)(Dm, H, Dh) * Dm ** (-0.5)), 'Wo': _w((lambda *s: torch.randn(*s, dtype=torch.bfloat16) * 0.8)(H, Dh, Dm) * (H * Dh) ** (-0.5)), 'seg_len': seg}
    _A_in = _A_setup()

    def _B_setup():
        B, S, D, F = (1, 2048, 640, 1536)
        return {'x': _w((lambda *s: torch.randn(*s, dtype=torch.bfloat16) * 0.05)(B, S, D)), 'w1': _w((lambda *s: torch.randn(*s, dtype=torch.bfloat16) * 0.8)(D, D) * D ** (-0.5)), 'w2': _w((lambda *s: torch.randn(*s, dtype=torch.bfloat16) * 0.8)(D, D) * D ** (-0.5)), 'w3': _w((lambda *s: torch.randn(*s, dtype=torch.bfloat16) * 0.8)(D, F) * D ** (-0.5)), 'w4': _w((lambda *s: torch.randn(*s, dtype=torch.bfloat16) * 0.8)(F, D) * F ** (-0.5))}
    _B_in = _B_setup()
    return {'A_x': _A_in['x'], 'A_mem0': _A_in['mem0'], 'A_Wq': _A_in['Wq'], 'A_Wk': _A_in['Wk'], 'A_Wv': _A_in['Wv'], 'A_Wo': _A_in['Wo'], 'A_seg_len': _A_in['seg_len'], 'B_x': _B_in['x'], 'B_w1': _B_in['w1'], 'B_w2': _B_in['w2'], 'B_w3': _B_in['w3'], 'B_w4': _B_in['w4']}

def reference(A_x, A_mem0, A_Wq, A_Wk, A_Wv, A_Wo, A_seg_len, B_x, B_w1, B_w2, B_w3, B_w4):

    def _A_ref(x, mem0, Wq, Wk, Wv, Wo, seg_len):
        B, S, Dm = x.shape
        H, Dh = (Wq.shape[1], Wq.shape[2])
        M = mem0.shape[1]
        scale = Dh ** (-0.5)
        n_seg = S // seg_len
        L = M + seg_len
        idx = torch.arange(L)
        mask = (idx[:, None] < M) | (idx[:, None] >= idx[None, :])
        mem = mem0
        outs = []
        for s in range(n_seg):
            xs = x[:, s * seg_len:(s + 1) * seg_len, :].clone()
            h = torch.concatenate([mem, xs], axis=1)
            q = torch.einsum('btd,dhe->bhte', h, Wq)
            k = torch.einsum('btd,dhe->bhte', h, Wk)
            v = torch.einsum('btd,dhe->bhte', h, Wv)
            scores = torch.einsum('bhqe,bhke->bhqk', q, k) * scale
            scores = torch.where(mask[None, None], scores, -1000000000.0)
            p = _softmax(scores, axis=-1)
            o = torch.einsum('bhqk,bhke->bhqe', p, v)
            o = torch.einsum('bhte,hed->btd', o, Wo)
            mem = o[:, :M, :].clone()
            outs.append(o[:, M:, :])
        return torch.concatenate(outs, axis=1)

    def _B_ref(x, w1, w2, w3, w4):
        B, S, D = x.shape
        h = _gelu(_layernorm(x, axis=-1) @ w1)
        c = D // 4
        g0 = _pad(h[:, :, 0 * c:1 * c], ((0, 0), (1, 0), (0, 0)))[:, :S, :]
        g1 = _pad(h[:, :, 1 * c:2 * c], ((0, 0), (0, 1), (0, 0)))[:, 1:, :]
        g2 = _pad(h[:, :, 2 * c:3 * c], ((0, 0), (2, 0), (0, 0)))[:, :S, :]
        g3 = _pad(h[:, :, 3 * c:], ((0, 0), (0, 2), (0, 0)))[:, 2:, :]
        hs = torch.concatenate([g0, g1, g2, g3], axis=-1) @ w2
        x1 = x + hs
        h2 = _gelu(_layernorm(x1, axis=-1) @ w3) @ w4
        return x1 + h2
    x = A_x
    x = x + _A_ref(_layernorm(x, axis=-1), A_mem0, A_Wq, A_Wk, A_Wv, A_Wo, A_seg_len)
    x = x + _B_ref(_layernorm(x, axis=-1), B_w1, B_w2, B_w3, B_w4)
    x = x + _A_ref(_layernorm(x, axis=-1), A_mem0, A_Wq, A_Wk, A_Wv, A_Wo, A_seg_len)
    x = x + _B_ref(_layernorm(x, axis=-1), B_w1, B_w2, B_w3, B_w4)
    return x
```

```python
import re


def v(i, n=1):
    return f"v{i}" if n == 1 else f"v[{i}:{i + n - 1}]"


def a(i, n=1):
    return f"a{i}" if n == 1 else f"a[{i}:{i + n - 1}]"


def s(i, n=1):
    return f"s{i}" if n == 1 else f"s[{i}:{i + n - 1}]"


_REG = re.compile(r"^(-|abs\(|-abs\()?([vas])(?:(\d+)|\[(\d+):(\d+)\])\)?$")


def regs_of(op):
    op = op.strip()
    if op in ("vcc", "exec"):
        return {(op, 0)}
    if op in ("vcc_lo", "vcc_hi"):
        return {("vcc", 0)}
    if op in ("exec_lo", "exec_hi"):
        return {("exec", 0)}
    if op == "m0":
        return {("m0", 0)}
    m = _REG.match(op)
    if not m:
        return set()
    k = m.group(2)
    if m.group(3) is not None:
        return {(k, int(m.group(3)))}
    return {(k, i) for i in range(int(m.group(4)), int(m.group(5)) + 1)}


TRANS = ("v_exp_f32", "v_log_f32", "v_rcp_f32", "v_rsq_f32", "v_sqrt_f32", "v_sin_f32", "v_cos_f32", "v_rcp_iflag_f32")


class Ins:
    __slots__ = ("text", "mn", "kind", "rd", "wr", "srcC", "ab", "passes", "dpp", "trans", "ws", "storedata", "perm", "rdlane", "lds_dma", "sgpr_rd_const", "dst")

    def __init__(self, text):
        self.text = text
        t = text.split(";")[0].strip()
        parts = t.split(None, 1)
        mn = parts[0]
        self.mn = mn
        rest = parts[1] if len(parts) > 1 else ""
        ops, cur, depth = [], "", 0
        for ch in rest:
            if ch in "[(":
                depth += 1
            if ch in "])":
                depth -= 1
            if ch == "," and depth == 0:
                ops.append(cur.strip())
                cur = ""
            else:
                cur += ch
        if cur.strip():
            ops.append(cur.strip())
        mods = ""
        if ops:
            sp = ops[-1].split(None, 1)
            ops[-1] = sp[0]
            mods = sp[1] if len(sp) > 1 else ""
        self.rd, self.wr = set(), set()
        self.srcC, self.ab, self.dst = set(), set(), set()
        self.passes = 0
        self.dpp = False
        self.trans = False
        self.ws = 1
        self.storedata = set()
        self.perm = False
        self.rdlane = False
        self.lds_dma = False
        R = [regs_of(o) for o in ops]
        if mn == "s_nop":
            self.kind = "nop"
            self.ws = int(ops[0], 0) + 1
        elif mn.startswith("v_mfma"):
            self.kind = "mfma"
            self.passes = 8 if "32x32" in mn else 4
            self.wr = set(R[0])
            self.dst = set(R[0])
            self.ab = R[1] | R[2]
            self.srcC = set(R[3])
            self.rd = self.ab | self.srcC
        elif mn.startswith("v_"):
            self.kind = "valu"
            base = mn.replace("_e32", "").replace("_e64", "").replace("_dpp", "").replace("_sdwa", "")
            self.trans = base in TRANS
            self.dpp = "_dpp" in mn or "row_" in mods or "quad_perm" in mods
            if base.startswith("v_permlane") and "swap" in base:
                self.perm = True
                self.rd = R[0] | R[1]
                self.wr = R[0] | R[1]
            elif base.startswith("v_cmp"):
                self.wr = set(R[0])
                for r in R[1:]:
                    self.rd |= r
                if base.startswith("v_cmpx"):
                    self.wr |= {("exec", 0)}
            elif base in ("v_readfirstlane_b32", "v_readlane_b32"):
                self.rdlane = True
                self.wr = set(R[0])
                for r in R[1:]:
                    self.rd |= r
            elif base in ("v_add_co_u32", "v_sub_co_u32", "v_subrev_co_u32", "v_addc_co_u32", "v_subb_co_u32", "v_mad_u64_u32", "v_div_scale_f32"):
                self.wr = R[0] | R[1]
                for r in R[2:]:
                    self.rd |= r
            else:
                self.wr = set(R[0])
                for r in R[1:]:
                    self.rd |= r
                if base in ("v_fmac_f32", "v_dot2c_f32_bf16", "v_writelane_b32", "v_pk_fmac_f16") or self.dpp:
                    self.rd |= R[0]
                if base == "v_cndmask_b32" and len(ops) == 3:
                    self.rd |= {("vcc", 0)}
        elif mn.startswith("buffer_") or mn.startswith("global_"):
            self.kind = "vmem"
            allmods = " " + mods + " "
            self.lds_dma = " lds " in allmods or "_lds_" in mn
            if self.lds_dma:
                for r in R:
                    self.rd |= r
                self.rd |= {("m0", 0)}
            elif "load" in mn:
                self.wr = set(R[0])
                for r in R[1:]:
                    self.rd |= r
            elif "atomic" in mn:
                for r in R:
                    self.rd |= r
                if " sc0 " in allmods:
                    self.wr = set(R[0])
            else:
                for r in R:
                    self.rd |= r
                di = 0 if mn.startswith("buffer_") else 1
                if "x3" in mn or "x4" in mn:
                    self.storedata = set(R[di])
        elif mn.startswith("ds_"):
            self.kind = "ds"
            if "read" in mn or "permute" in mn or "swizzle" in mn:
                self.wr = set(R[0])
                for r in R[1:]:
                    self.rd |= r
            else:
                for r in R:
                    self.rd |= r
        elif mn.startswith("s_"):
            self.kind = "salu"
            if mn.startswith("s_cmp") or mn.startswith("s_cbranch") or mn in ("s_branch", "s_barrier", "s_waitcnt", "s_sleep", "s_setprio", "s_endpgm", "s_bitcmp1_b32", "s_bitcmp0_b32"):
                for r in R:
                    self.rd |= r
            else:
                if R:
                    self.wr = set(R[0])
                for r in R[1:]:
                    self.rd |= r
                if "saveexec" in mn:
                    self.wr |= {("exec", 0)}
        else:
            raise ValueError("unknown instruction: " + text)


def _isvec(rs):
    return {r for r in rs if r[0] in "va"}


def _issgpr(rs):
    return {r for r in rs if r[0] in ("s", "vcc")}


def need(p, c):
    n = 0
    if p.kind == "mfma":
        far = 12 if p.passes == 8 else 8
        if c is None:
            return far
        if c.kind == "mfma":
            if c.ab & p.wr:
                n = max(n, far)
            if c.srcC & p.wr:
                if not (c.srcC == p.wr and c.passes == p.passes):
                    n = max(n, 10 if p.passes == 8 else 6)
            elif c.wr & p.wr:
                n = max(n, far)
        else:
            if (c.rd | c.wr) & p.wr:
                n = max(n, far)
            if c.kind == "valu" and (c.wr & p.srcC):
                n = max(n, 7 if p.passes == 8 else 3)
            if c.kind in ("vmem", "ds") and (c.wr & p.srcC):
                n = max(n, 7 if p.passes == 8 else 3)
        return n
    if p.kind == "valu":
        wv = _isvec(p.wr)
        wsg = _issgpr(p.wr)
        wex = ("exec", 0) in p.wr
        if c is None:
            if wv:
                n = max(n, 2)
            if wsg:
                n = max(n, 5 if any(r[0] == "s" for r in wsg) else 2)
            if wex:
                n = max(n, 5)
            return n
        if c.kind == "mfma" and (c.rd & wv):
            n = max(n, 2)
        if c.kind == "mfma" and wex:
            n = max(n, 4)
        if c.kind == "valu":
            if (c.dpp or c.perm) and (c.rd & wv):
                n = max(n, 2)
            if c.rdlane and (c.rd & wv):
                n = max(n, 1)
            if p.trans and not c.trans and (c.rd & wv):
                n = max(n, 1)
            if p.trans and c.trans and (c.rd & wv):
                n = max(n, 1)
            if "sdwa" in p.mn or "op_sel" in p.text:
                if (c.rd | c.wr) & wv:
                    n = max(n, 1)
            if c.rd & wsg:
                n = max(n, 4 if c.rdlane else 2)
            if wex:
                n = max(n, 5 if c.dpp else 4 if (c.rdlane or c.perm) else 2 if ("exec", 0) in c.rd else 0)
        if c.kind == "vmem" and (c.rd & wsg):
            n = max(n, 5)
        return n
    if p.kind == "salu":
        if ("m0", 0) in p.wr:
            if c is None or ("m0", 0) in c.rd:
                n = max(n, 1)
        return n
    if p.kind == "vmem" and p.storedata:
        if c is None:
            return 2
        if c.wr & p.storedata:
            n = max(n, 2)
        return n
    return n


class Asm:
    def __init__(self):
        self.items = []
        self._lab = 0

    def __call__(self, text):
        for line in text.strip().split("\n"):
            line = line.strip()
            if not line or line.startswith(";"):
                continue
            ins = Ins(line)
            if ins.mn.startswith("s_cbranch") or ins.mn == "s_branch":
                self.items.append(("f", 1))
            self.items.append(("i", ins))

    def label(self, name):
        self.items.append(("f", 0))
        self.items.append(("l", name))

    def nf(self, text):
        self.items.append(("i", Ins(text)))

    def label_nf(self, name):
        self.items.append(("l", name))

    def newlabel(self, stem="L"):
        self._lab += 1
        return f"{stem}_{self._lab}"

    def raw(self, text):
        self.items.append(("r", text))

    def comment(self, text):
        self.items.append(("r", "; " + text))

    def flush(self):
        self.items.append(("f", 0))

    def render(self):
        out = []
        hist = []
        nnop = 0
        for it in self.items:
            if it[0] == "r":
                out.append(it[1])
                continue
            if it[0] == "l":
                out.append(it[1] + ":")
                continue
            c = it[1] if it[0] == "i" else None
            dist = it[1] if it[0] == "f" else 0
            req = 0
            for p in reversed(hist):
                if dist >= 12:
                    break
                n = need(p, c)
                if n - dist > req:
                    req = n - dist
                dist += p.ws
            if req > 0:
                nop = Ins(f"s_nop {req - 1}")
                out.append("  " + nop.text)
                hist.append(nop)
                nnop += 1
            if c is not None:
                out.append("  " + c.text)
                hist.append(c)
                if len(hist) > 40:
                    hist = hist[-20:]
        return "\n".join(out) + "\n"

    def count(self):
        return sum(1 for it in self.items if it[0] == "i")
```

```python
import re


def v(i, n=1):
    return f"v{i}" if n == 1 else f"v[{i}:{i + n - 1}]"


def a(i, n=1):
    return f"a{i}" if n == 1 else f"a[{i}:{i + n - 1}]"


def s(i, n=1):
    return f"s{i}" if n == 1 else f"s[{i}:{i + n - 1}]"


_REG = re.compile(r"^(-|abs\(|-abs\()?([vas])(?:(\d+)|\[(\d+):(\d+)\])\)?$")


def regs_of(op):
    op = op.strip()
    if op in ("vcc", "exec"):
        return {(op, 0)}
    if op in ("vcc_lo", "vcc_hi"):
        return {("vcc", 0)}
    if op in ("exec_lo", "exec_hi"):
        return {("exec", 0)}
    if op == "m0":
        return {("m0", 0)}
    m = _REG.match(op)
    if not m:
        return set()
    k = m.group(2)
    if m.group(3) is not None:
        return {(k, int(m.group(3)))}
    return {(k, i) for i in range(int(m.group(4)), int(m.group(5)) + 1)}


TRANS = ("v_exp_f32", "v_log_f32", "v_rcp_f32", "v_rsq_f32", "v_sqrt_f32", "v_sin_f32", "v_cos_f32", "v_rcp_iflag_f32")


class Ins:
    __slots__ = ("text", "mn", "kind", "rd", "wr", "srcC", "ab", "passes", "dpp", "trans", "ws", "storedata", "perm", "rdlane", "lds_dma", "sgpr_rd_const", "dst")

    def __init__(self, text):
        self.text = text
        t = text.split(";")[0].strip()
        parts = t.split(None, 1)
        mn = parts[0]
        self.mn = mn
        rest = parts[1] if len(parts) > 1 else ""
        ops, cur, depth = [], "", 0
        for ch in rest:
            if ch in "[(":
                depth += 1
            if ch in "])":
                depth -= 1
            if ch == "," and depth == 0:
                ops.append(cur.strip())
                cur = ""
            else:
                cur += ch
        if cur.strip():
            ops.append(cur.strip())
        mods = ""
        if ops:
            sp = ops[-1].split(None, 1)
            ops[-1] = sp[0]
            mods = sp[1] if len(sp) > 1 else ""
        self.rd, self.wr = set(), set()
        self.srcC, self.ab, self.dst = set(), set(), set()
        self.passes = 0
        self.dpp = False
        self.trans = False
        self.ws = 1
        self.storedata = set()
        self.perm = False
        self.rdlane = False
        self.lds_dma = False
        R = [regs_of(o) for o in ops]
        if mn == "s_nop":
            self.kind = "nop"
            self.ws = int(ops[0], 0) + 1
        elif mn.startswith("v_smfmac"):
            self.kind = "mfma"
            self.passes = 8 if "32x32" in mn else 4
            self.wr = set(R[0])
            self.dst = set(R[0])
            self.ab = R[1] | R[2] | R[3]
            self.srcC = set(R[0])
            self.rd = self.ab | self.srcC
        elif mn.startswith("v_mfma"):
            self.kind = "mfma"
            self.passes = 8 if "32x32" in mn else 4
            self.wr = set(R[0])
            self.dst = set(R[0])
            self.ab = R[1] | R[2]
            self.srcC = set(R[3])
            self.rd = self.ab | self.srcC
        elif mn.startswith("v_"):
            self.kind = "valu"
            base = mn.replace("_e32", "").replace("_e64", "").replace("_dpp", "").replace("_sdwa", "")
            self.trans = base in TRANS
            self.dpp = "_dpp" in mn or "row_" in mods or "quad_perm" in mods
            if base.startswith("v_permlane") and "swap" in base:
                self.perm = True
                self.rd = R[0] | R[1]
                self.wr = R[0] | R[1]
            elif base.startswith("v_cmp"):
                self.wr = set(R[0])
                for r in R[1:]:
                    self.rd |= r
                if base.startswith("v_cmpx"):
                    self.wr |= {("exec", 0)}
            elif base in ("v_readfirstlane_b32", "v_readlane_b32"):
                self.rdlane = True
                self.wr = set(R[0])
                for r in R[1:]:
                    self.rd |= r
            elif base in ("v_add_co_u32", "v_sub_co_u32", "v_subrev_co_u32", "v_addc_co_u32", "v_subb_co_u32", "v_mad_u64_u32", "v_div_scale_f32"):
                self.wr = R[0] | R[1]
                for r in R[2:]:
                    self.rd |= r
            else:
                self.wr = set(R[0])
                for r in R[1:]:
                    self.rd |= r
                if base in ("v_fmac_f32", "v_dot2c_f32_bf16", "v_writelane_b32", "v_pk_fmac_f16") or self.dpp:
                    self.rd |= R[0]
                if base == "v_cndmask_b32" and len(ops) == 3:
                    self.rd |= {("vcc", 0)}
        elif mn.startswith("buffer_") or mn.startswith("global_"):
            self.kind = "vmem"
            allmods = " " + mods + " "
            self.lds_dma = " lds " in allmods or "_lds_" in mn
            if self.lds_dma:
                for r in R:
                    self.rd |= r
                self.rd |= {("m0", 0)}
            elif "load" in mn:
                self.wr = set(R[0])
                for r in R[1:]:
                    self.rd |= r
            elif "atomic" in mn:
                for r in R:
                    self.rd |= r
                if " sc0 " in allmods:
                    self.wr = set(R[0])
            else:
                for r in R:
                    self.rd |= r
                di = 0 if mn.startswith("buffer_") else 1
                if "x3" in mn or "x4" in mn:
                    self.storedata = set(R[di])
        elif mn.startswith("ds_"):
            self.kind = "ds"
            if "read" in mn or "permute" in mn or "swizzle" in mn:
                self.wr = set(R[0])
                for r in R[1:]:
                    self.rd |= r
            else:
                for r in R:
                    self.rd |= r
        elif mn.startswith("s_"):
            self.kind = "salu"
            if mn.startswith("s_cmp") or mn.startswith("s_cbranch") or mn in ("s_branch", "s_barrier", "s_waitcnt", "s_sleep", "s_setprio", "s_endpgm", "s_bitcmp1_b32", "s_bitcmp0_b32"):
                for r in R:
                    self.rd |= r
            else:
                if R:
                    self.wr = set(R[0])
                for r in R[1:]:
                    self.rd |= r
                if "saveexec" in mn:
                    self.wr |= {("exec", 0)}
        else:
            raise ValueError("unknown instruction: " + text)


def _isvec(rs):
    return {r for r in rs if r[0] in "va"}


def _issgpr(rs):
    return {r for r in rs if r[0] in ("s", "vcc")}


def need(p, c):
    n = 0
    if p.kind == "mfma":
        far = 12 if p.passes == 8 else 8
        if c is None:
            return far
        if c.kind == "mfma":
            if c.ab & p.wr:
                n = max(n, far)
            if c.srcC & p.wr:
                if not (c.srcC == p.wr and c.passes == p.passes):
                    n = max(n, 10 if p.passes == 8 else 6)
            elif c.wr & p.wr:
                n = max(n, far)
        else:
            if (c.rd | c.wr) & p.wr:
                n = max(n, far)
            if c.kind == "valu" and (c.wr & p.srcC):
                n = max(n, 7 if p.passes == 8 else 3)
            if c.kind in ("vmem", "ds") and (c.wr & p.srcC):
                n = max(n, 7 if p.passes == 8 else 3)
        return n
    if p.kind == "valu":
        wv = _isvec(p.wr)
        wsg = _issgpr(p.wr)
        wex = ("exec", 0) in p.wr
        if c is None:
            if wv:
                n = max(n, 2)
            if wsg:
                n = max(n, 5 if any(r[0] == "s" for r in wsg) else 2)
            if wex:
                n = max(n, 5)
            return n
        if c.kind == "mfma" and (c.rd & wv):
            n = max(n, 2)
        if c.kind == "mfma" and wex:
            n = max(n, 4)
        if c.kind == "valu":
            if (c.dpp or c.perm) and (c.rd & wv):
                n = max(n, 2)
            if c.rdlane and (c.rd & wv):
                n = max(n, 1)
            if p.trans and not c.trans and (c.rd & wv):
                n = max(n, 1)
            if p.trans and c.trans and (c.rd & wv):
                n = max(n, 1)
            if "sdwa" in p.mn or "op_sel" in p.text:
                if (c.rd | c.wr) & wv:
                    n = max(n, 1)
            if c.rd & wsg:
                n = max(n, 4 if c.rdlane else 2)
            if wex:
                n = max(n, 5 if c.dpp else 4 if (c.rdlane or c.perm) else 2 if ("exec", 0) in c.rd else 0)
        if c.kind == "vmem" and (c.rd & wsg):
            n = max(n, 5)
        return n
    if p.kind == "salu":
        if ("m0", 0) in p.wr:
            if c is None or ("m0", 0) in c.rd:
                n = max(n, 1)
        return n
    if p.kind == "vmem" and p.storedata:
        if c is None:
            return 2
        if c.wr & p.storedata:
            n = max(n, 2)
        return n
    return n


class Asm:
    def __init__(self):
        self.items = []
        self._lab = 0
        self.ool = []

    def __call__(self, text):
        for line in text.strip().split("\n"):
            line = line.strip()
            if not line or line.startswith(";"):
                continue
            if line.endswith(" LOCAL"):
                line = line[:-6]
                o, b = self.newlabel("wt"), self.newlabel("wb")
                self.items.append(("i", Ins("s_cmp_lg_u32 s49, 0")))
                self.nf(f"s_cbranch_scc1 {o}")
                self.items.append(("i", Ins(line)))
                self.label_nf(b)
                self.ool.append((o, line, b))
                continue
            ins = Ins(line)
            if ins.mn.startswith("s_cbranch") or ins.mn == "s_branch":
                self.items.append(("f", 1))
            self.items.append(("i", ins))

    def label(self, name):
        self.items.append(("f", 0))
        self.items.append(("l", name))

    def nf(self, text):
        self.items.append(("i", Ins(text)))

    def label_nf(self, name):
        self.items.append(("l", name))

    def emit_ool(self):
        for o, line, b in self.ool:
            self.label_nf(o)
            self.items.append(("i", Ins("s_nop 7")))
            self.items.append(("i", Ins(line + " sc1")))
            self.nf(f"s_branch {b}")
        self.ool = []

    def newlabel(self, stem="L"):
        self._lab += 1
        return f"{stem}_{self._lab}"

    def raw(self, text):
        self.items.append(("r", text))

    def comment(self, text):
        self.items.append(("r", "; " + text))

    def flush(self):
        self.items.append(("f", 0))

    def render(self):
        out = []
        hist = []
        nnop = 0
        for it in self.items:
            if it[0] == "r":
                out.append(it[1])
                continue
            if it[0] == "l":
                out.append(it[1] + ":")
                continue
            c = it[1] if it[0] == "i" else None
            dist = it[1] if it[0] == "f" else 0
            req = 0
            for p in reversed(hist):
                if dist >= 12:
                    break
                n = need(p, c)
                if n - dist > req:
                    req = n - dist
                dist += p.ws
            if req > 0:
                nop = Ins(f"s_nop {req - 1}")
                out.append("  " + nop.text)
                hist.append(nop)
                nnop += 1
            if c is not None:
                out.append("  " + c.text)
                hist.append(c)
                if len(hist) > 40:
                    hist = hist[-20:]
        return "\n".join(out) + "\n"

    def count(self):
        return sum(1 for it in self.items if it[0] == "i")
```

```python
from common2 import *
from chain2 import Stream, stats_lane, stats_groups, T


class Cap:
    def __init__(self):
        self.l = []

    def __call__(self, x):
        self.l.append(x)


def capture(fn):
    c = Cap()
    fn(c)
    return c.l


def dense_lane(A, dst, tmp, stride):
    A(f"v_lshrrev_b32 {v(dst)}, 2, v0")
    A(f"v_mul_u32_u24 {v(dst)}, {stride}, {v(dst)}")
    A(f"v_and_b32 {v(tmp)}, 3, v0")
    A(f"v_lshl_add_u32 {v(dst)}, {v(tmp)}, 3, {v(dst)}")


def finish_stats(A, s1, s2, twice=False):
    A(f"v_mul_f32 {v(s1)}, {f32(1.0 / 640)}, {v(s1)}")
    A(f"v_mul_f32 {v(s2)}, {f32(1.0 / 640)}, {v(s2)}")
    A(f"v_fma_f32 {v(s2)}, -{v(s1)}, {v(s1)}, {v(s2)}")
    A(f"v_max_f32 {v(s2)}, 0, {v(s2)}")
    if twice:
        A(f"v_mul_f32 {v(s2)}, {f32(1.0 + 1e-5)}, {v(s2)}")
    A(f"v_add_f32 {v(s2)}, {f32(1e-10 if twice else 1e-5)}, {v(s2)}")
    A(f"v_rsq_f32 {v(s2)}, {v(s2)}")


def gen_po(A, cfg, nwg):
    V_L16, V_FO, V_FV, V_ONE, V_FA, V_L4, V_ST, V_LW, V_CO, V_CV = range(1, 11)
    V_T = 12
    V_A = 20
    V_ACC = 116
    V_FI = 132
    V_U = 144
    V_KP = 164
    V_PK = 168
    L_W = 24576
    S_I, S_L, S_S, S_L1, S_S1, S_L2, S_S2, S_H, S_U, S_UO = range(50, 60)
    S_OUT0, S_SRC0, S_FVO0, S_OX0, S_OX1, S_REAL, S_LC, S_LN, S_OUT = range(68, 77)
    S_PC, S_CR, S_TH = 77, 78, 79
    S_PS, S_PF, S_LDW, S_UX = range(80, 84)
    S_MV, S_MS, S_MF = 86, 88, 90
    C = cfg.poc
    N = 64 + C + cfg.pop

    A.label("ROLE_PO")
    A(f"v_lshlrev_b32 {v(V_L16)}, 4, v0")
    A(f"v_lshlrev_b32 {v(V_L4)}, 2, v0")
    A(f"v_mov_b32 {v(V_ONE)}, 1")
    A(f"v_mov_b32 {v(V_LW)}, {L_W}")
    A(f"s_mov_b32 {s(S_H)}, {s(S_ROLE)}")
    A(f"v_and_b32 {v(V_FA)}, 15, v0")
    A(f"v_lshlrev_b32 {v(V_FA)}, 3, {v(V_FA)}")
    A(f"v_lshrrev_b32 {v(V_T)}, 4, v0")
    A(f"v_lshl_add_u32 {v(V_FA)}, {v(V_T)}, 8, {v(V_FA)}")
    A(f"v_and_b32 {v(V_FO)}, 1, v0")
    A(f"s_lshl_b32 {s(T)}, {s(S_H)}, 1")
    A(f"v_add_lshl_u32 {v(V_FO)}, {v(V_FO)}, {s(T)}, 2")
    A(f"s_lshr_b32 {s(S_U)}, {s(S_H)}, 1")
    A(f"s_add_u32 {s(S_U)}, {s(S_U)}, 64")
    A(f"s_andn2_b32 {s(S_REAL)}, {s(S_WAVE)}, {s(S_H)}")
    A(f"s_and_b32 {s(S_REAL)}, {s(S_REAL)}, 1")
    A(f"s_add_u32 {s(T)}, {s(S_H)}, 32")
    A(f"s_cmp_eq_u32 {s(S_WAVE)}, 2")
    A(f"s_cselect_b32 {s(S_U)}, {s(T)}, {s(S_U)}")
    A(f"s_cmp_eq_u32 {s(S_WAVE)}, 3")
    A(f"s_cselect_b32 {s(S_U)}, {s(S_H)}, {s(S_U)}")
    A(f"s_cmp_ge_u32 {s(S_WAVE)}, 2")
    A(f"s_cselect_b32 {s(S_REAL)}, 1, {s(S_REAL)}")
    A(f"s_lshr_b32 {s(S_UO)}, {s(S_U)}, 1")
    A(f"s_lshl_b32 {s(S_UO)}, {s(S_UO)}, 10")
    A(f"s_and_b32 {s(T)}, {s(S_U)}, 1")
    A(f"s_lshl_b32 {s(T)}, {s(T)}, 7")
    A(f"s_add_u32 {s(S_UO)}, {s(S_UO)}, {s(T)}")
    A(f"s_and_b32 {s(T)}, {s(S_UO)}, 0xffffe000")
    A(f"s_add_u32 {s(S_UX)}, {s(S_UO)}, {s(T)}")
    A(f"s_lshr_b32 {s(T)}, {s(S_H)}, 3")
    A(f"s_mul_i32 {s(S_OUT0)}, {s(T)}, {8 * VOX_G}")
    A(f"s_and_b32 {s(T)}, {s(S_H)}, 7")
    A(f"s_lshl_b32 {s(T)}, {s(T)}, 10")
    A(f"s_add_u32 {s(S_OUT0)}, {s(S_OUT0)}, {s(T)}")
    A(f"s_mul_i32 {s(T)}, {s(S_WAVE)}, {10 * 8192}")
    A(f"s_add_u32 {s(S_OUT0)}, {s(S_OUT0)}, {s(T)}")
    A(f"s_add_u32 {s(S_OUT0)}, {s(S_OUT0)}, {VOX}")
    A(f"s_mul_i32 {s(S_LDW)}, {s(S_WAVE)}, 3072")
    A(f"s_mul_i32 {s(S_SRC0)}, {s(S_H)}, {QK_H}")
    A(f"s_add_u32 {s(S_SRC0)}, {s(S_SRC0)}, {s(S_LDW)}")
    A(f"s_add_u32 {s(S_SRC0)}, {s(S_SRC0)}, {QK + 24576}")
    A(f"s_lshl2_add_u32 {s(S_FVO0)}, {s(S_H)}, {s(S_WAVE)}")
    A(f"s_lshl_b32 {s(S_FVO0)}, {s(S_FVO0)}, 2")
    A(f"s_add_u32 {s(S_FVO0)}, {s(S_FVO0)}, {flag_row(F_VO)}")
    A(f"s_lshr_b32 {s(T)}, {s(S_H)}, 3")
    A(f"s_lshl_b32 {s(T)}, {s(T)}, 5")
    A(f"s_lshl2_add_u32 {s(T)}, {s(S_WAVE)}, {s(T)}")
    A(f"v_and_b32 {v(V_CO)}, 3, v0")
    A(f"v_add_lshl_u32 {v(V_CO)}, {v(V_CO)}, {s(T)}, 2")
    for r in (S_PS, S_PF, S_PC):
        A(f"s_mov_b32 {s(r)}, 0")
    for r in (S_MV, S_MS, S_MF):
        A(f"s_mov_b64 {s(r, 2)}, 0")
    init_barrier_arrive(A, V_T)
    LD = Loader(A, V_T, T + 3)
    V_SO = V_T + 6
    dense_lane(A, V_SO, V_T + 7, 1280)
    A(f"s_mul_i32 {s(T)}, {s(S_WAVE)}, 320")
    A(f"v_add_u32 {v(V_SO)}, {s(T)}, {v(V_SO)}")
    make_srd(A, SRD_W, P_WO, 6144 * 1280)
    A(f"s_mul_i32 {s(T)}, {s(S_WAVE)}, 10240")
    A(f"s_mul_i32 {s(T + 1)}, {s(S_H)}, {192 * 1280}")
    A(f"s_add_u32 {s(T + 1)}, {s(T)}, {s(T + 1)}")
    for j in range(6):
        LD.add(LD.dma_b(T + 1, j * 40960, V_L16), [(V_SO, [(a((t * 6 + j) * 4 + 2 * u, 2), 16 * u * 1280 + t * 32) for t in range(10) for u in range(2)])])
    LD.emit()
    init_barrier_wait(A, V_T, nwg, cfg)
    for l in range(2):
        near_half(A, cfg, S_OX0 + l, 1 + l, V_T)
        A(f"s_add_u32 {s(S_OX0 + l)}, {s(S_OX0 + l)}, {s(S_UX)}")
        A(f"s_add_u32 {s(S_OX0 + l)}, {s(S_OX0 + l)}, {OXP + l * OXP_L}")

    S_FB, S_FK, S_FXA, S_FT, S_XI, S_PV = 16, 17, 20, 21, 22, 23
    S_GM = 24
    NOFF = 10
    S_VS, S_VR, S_XA, S_XS = range(36, 40)

    def item(d, rl, rs):
        return [f"s_add_u32 {s(T + 2)}, {s(S_I)}, {d}", f"s_min_u32 {s(T + 2)}, {s(T + 2)}, {2 * N - 1}"] + item_list(T + 2, rl, rs, cfg.LAG + cfg.pod, cfg.first, T, N)

    def vrow(rl, rs, dst):
        return [f"s_min_u32 {s(dst)}, {s(rs)}, 63", f"s_lshl_b32 {s(T + 4)}, {s(rl)}, 6", f"s_add_u32 {s(dst)}, {s(dst)}, {s(T + 4)}",
                f"s_lshl_b32 {s(dst)}, {s(dst)}, 9", f"s_add_u32 {s(dst)}, {s(dst)}, {flag_row(F_V)}"]

    def vsrc(rl, rs, dst):
        L = [f"s_min_u32 {s(dst)}, {s(rs)}, 63"]
        if cfg.ring:
            L.append(f"s_and_b32 {s(dst)}, {s(dst)}, {cfg.ring - 1}")
        L += [f"s_mul_i32 {s(dst)}, {s(dst)}, {QK_SEG}", f"s_add_u32 {s(dst)}, {s(dst)}, {s(S_SRC0)}"]
        if cfg.lstride:
            L += [f"s_mul_i32 {s(T + 4)}, {s(rl)}, {cfg.lstride}", f"s_add_u32 {s(dst)}, {s(dst)}, {s(T + 4)}"]
        return L

    def v_dma(src, bs):
        L = [f"buffer_load_dwordx4 {v(V_L16)}, {WS}, {s(src)} offen offset:{k * 1024} sc1 lds" for k in range(3)]
        L[0] = f"s_add_u32 m0, {s(S_LDW)}, {bs * 12288}\n" + L[0]
        return L

    def prep():
        o = NOFF
        L = [f"s_lshl_b32 {s(S_PV + o)}, {s(S_L)}, 15", f"s_add_u32 {s(S_PV + o)}, {s(S_PV + o)}, {s(S_FVO0)}", f"s_add_u32 {s(S_I)}, {s(S_I)}, 1"]
        F = [f"s_sub_u32 {s(T + 3)}, {s(S_S)}, {C}",
             f"s_cmp_lt_u32 {s(T + 3)}, 64\ns_cselect_b32 {s(T + 4)}, {s(S_REAL)}, 0",
             f"s_cmp_lg_u32 {s(T + 4)}, 0\ns_cselect_b64 {s(S_GM + o, 2)}, -1, 0",
             f"s_and_b32 {s(T + 3)}, {s(T + 3)}, 63",
             f"s_bfe_u32 {s(S_FT + o)}, {s(T + 3)}, 0x10002",
             f"s_lshl_b32 {s(S_XI + o)}, {s(S_L)}, 6",
             f"s_add_u32 {s(S_XI + o)}, {s(S_XI + o)}, {s(T + 3)}",
             f"s_and_b32 {s(T + 3)}, {s(T + 3)}, 3",
             f"s_mul_i32 {s(T + 3)}, {s(T + 3)}, {OXP_SLOT}",
             f"s_cmp_eq_u32 {s(S_L)}, 0\ns_cselect_b32 {s(T + 4)}, {s(S_OX0)}, {s(S_OX1)}",
             f"s_add_u32 {s(S_FB + o)}, {s(T + 3)}, {s(T + 4)}"]
        R = [f"s_mov_b32 {s(d_)}, {s(s_)}" for d_, s_ in ((S_L, S_L1), (S_S, S_S1), (S_L1, S_L2), (S_S1, S_S2))]
        L += (F + R if cfg.pop else R + F)
        L += item(2, S_L2, S_S2) + vrow(S_L2, S_S2, S_VR) + vsrc(S_L1, S_S1, S_VS)
        L += [f"s_add_u32 {s(S_FK + o + k)}, {s(S_FB + o)}, {(k + 1) * OXP_SRC}" for k in range(3)]
        L += [f"s_mul_i32 {s(S_FXA + o)}, {s(S_XI + o)}, {XSEGS}", f"s_add_u32 {s(S_FXA + o)}, {s(S_FXA + o)}, {s(S_UO)}", f"s_add_u32 {s(S_FXA + o)}, {s(S_FXA + o)}, {XIN}"]
        return L

    def adopt():
        return [f"s_mov_b64 {s(16 + k, 2)}, {s(16 + NOFF + k, 2)}" for k in range(0, 10, 2)]

    def fin_loads():
        L = [f"buffer_load_dwordx2 {v(V_FI + 8, 2)}, {v(V_FA)}, {WS}, {s(S_FXA)} offen sc1"]
        return L + [f"buffer_load_dwordx2 {v(V_FI + 2 * k, 2)}, {v(V_FA)}, {WS}, {s(S_FK + k - 1 if k else S_FB)} offen sc1" for k in range(4)]

    def fin_compute(B):
        U = V_U
        for k in range(10):
            B(f"v_lshlrev_b32 {v(U + 2 * k)}, 16, {v(V_FI + k)}")
            B(f"v_and_b32 {v(U + 2 * k + 1)}, 0xffff0000, {v(V_FI + k)}")
        for i in range(4):
            B(f"v_add_f32 {v(U + i)}, {v(U + i)}, {v(U + 4 + i)}")
            B(f"v_add_f32 {v(U + 8 + i)}, {v(U + 8 + i)}, {v(U + 12 + i)}")
        for i in range(4):
            B(f"v_add_f32 {v(U + i)}, {v(U + i)}, {v(U + 8 + i)}")
        for i in range(4):
            B(f"v_add_f32 {v(U + i)}, {v(U + i)}, {v(U + 16 + i)}")
        for i in (0, 2):
            rnd2(B, V_KP + i // 2, U + i, U + i + 1)
        t = U + 4
        stats_lane(B, [U + i for i in range(4)], t)
        for op in ("v_permlane32_swap_b32", "v_permlane16_swap_b32"):
            B(f"v_mov_b32 {v(t + 2)}, {v(t)}")
            B(f"v_mov_b32 {v(t + 3)}, {v(t + 1)}")
            B(f"{op} {v(t)}, {v(t + 2)}")
            B(f"{op} {v(t + 1)}, {v(t + 3)}")
            B(f"v_add_f32 {v(t)}, {v(t)}, {v(t + 2)}")
            B(f"v_add_f32 {v(t + 1)}, {v(t + 1)}, {v(t + 3)}")
        for h in range(2):
            B(f"v_add_f32_dpp {v(V_KP + 2 + h)}, {v(t + h)}, {v(t + h)} quad_perm:[1,0,3,2] row_mask:0xf bank_mask:0xf")
        B(f"s_mov_b64 {s(S_MS, 2)}, {s(S_GM, 2)}")
        B(f"s_add_u32 {s(S_XA)}, {s(S_FXA)}, {XM - XIN}")
        B(f"s_lshl_b32 {s(S_XS)}, {s(S_U)}, 6")
        B(f"s_sub_u32 {s(S_XS)}, {s(S_XS)}, {s(S_UO)}")
        B(f"s_add_u32 {s(S_XS)}, {s(S_XS)}, {s(S_XA)}")
        B(f"s_add_u32 {s(S_XS)}, {s(S_XS)}, 40960")
        B(f"s_lshl_b32 {s(S_PS)}, {s(S_XI)}, 9")
        B(f"s_lshl2_add_u32 {s(S_PS)}, {s(S_U)}, {s(S_PS)}")
        B(f"s_add_u32 {s(S_PS)}, {s(S_PS)}, {flag_row(F_XM)}")

    def xm_stores():
        return [f"s_mov_b64 exec, {s(S_MS, 2)}\nbuffer_store_dwordx2 {v(V_KP, 2)}, {v(V_FA)}, {WS}, {s(S_XA)} offen sc1\n"
                f"s_and_b64 exec, {s(S_MS, 2)}, 0x5555\nbuffer_store_dwordx2 {v(V_KP + 2, 2)}, {v(V_L4)}, {WS}, {s(S_XS)} offen sc1\ns_mov_b64 exec, -1",
                f"s_mov_b32 {s(S_PF)}, {s(S_PS)}\ns_mov_b64 {s(S_MF, 2)}, {s(S_MS, 2)}\ns_mov_b64 {s(S_MS, 2)}, 0"]

    def xm_flag():
        flag_store(A, V_ONE, V_L16, S_PF, mask=S_MF)
        A(f"s_mov_b64 {s(S_MF, 2)}, 0")

    def vo_flag(LS):
        if cfg.timing == 4:
            A(f"s_lshl_b32 s100, {s(S_PC)}, 9")
            A(f"s_add_u32 s100, s100, {s(S_PV)}")
            A("s_sub_u32 s100, s100, 512")
        cnt_store(A, V_T + 6, V_L16, S_PC, S_PV, LS, mask=S_MV, ts=100)
        A(f"s_mov_b64 {s(S_MV, 2)}, 0")

    def flush(LS):
        A("s_waitcnt vmcnt(0)")
        vo_flag(LS)
        xm_flag()
        for x in xm_stores():
            A(x)
        A("s_waitcnt vmcnt(0)")
        xm_flag()

    fir = [V_FI + 2 * k for k in range(4)]

    def gate():
        ok = A.newlabel("gk")
        A(f"s_cmp_eq_u64 {s(S_GM, 2)}, 0")
        A(f"s_cbranch_scc1 {ok}")
        poll_tags(A, fin_loads(), fir, S_FT, V_T, rsleep=cfg.posl)
        A.label(ok)

    A(f"s_mov_b32 {s(S_I)}, -1")
    A(f"s_mov_b32 {s(S_L)}, 0")
    A(f"s_mov_b32 {s(S_S)}, 0")
    A(f"s_mov_b32 {s(S_XA)}, 0")
    A(f"s_mov_b32 {s(S_XS)}, 0")
    for x in item(1, S_L1, S_S1) + item(2, S_L2, S_S2) + prep() + adopt():
        A(x)
    A(f"s_mov_b32 {s(S_LC)}, 0")
    A(f"s_mov_b32 {s(S_LN)}, 0")
    stamp = Stamp(A, cfg, S_I, V_ST, (cfg.t0 if cfg.t0 < cfg.LAG else cfg.t0 * 2 - cfg.LAG) + 4)
    stamp.init()
    A(f"s_lshl1_add_u32 {s(T)}, {s(S_MODE)}, {s(S_REAL)}" if cfg.slow else f"s_mov_b32 {s(T)}, {s(S_REAL)}")
    for k, nm in ((1, "FR"), (2, "SN"), (3, "SR")):
        if k == 1 or cfg.slow:
            A(f"s_cmp_eq_u32 {s(T)}, {k}")
            A(f"s_cbranch_scc1 PO_{nm}0")

    def body(sx, LS, bs):
        real = sx[1] == "R"
        lg = Cnt(A, "lgkmcnt", 15)
        vm = Cnt(A, "vmcnt", 60)
        go, virt, slow, back = A.newlabel("go"), A.newlabel("vi"), A.newlabel("sl"), A.newlabel("bk")
        A.label(f"PO_{sx}{bs}")
        A(f"s_cmp_ge_u32 {s(S_S)}, 64")
        A(f"s_cbranch_scc1 {virt}")
        A(f"s_cmp_lg_u32 {s(S_LC)}, 0")
        A(f"s_mov_b32 {s(S_LC)}, {s(S_LN)}")
        A(f"s_cbranch_scc1 {go}")
        flush(LS)
        for x in vrow(S_L, S_S, T + 6) + vsrc(S_L, S_S, T + 5):
            A(x)
        park_spin(A, V_FO, V_FV, T + 6, cfg.posl)
        for x in v_dma(T + 5, bs):
            A(x)
        A("s_waitcnt vmcnt(0)")
        A("s_barrier")
        for k in range(12):
            A(f"ds_read_b128 {v(V_A + 48 * bs + 4 * k, 4)}, {v(V_L16)} offset:{bs * 12288 + k * 1024}")
        A("s_waitcnt lgkmcnt(0)")
        A.label(go)
        fine = Fine(A, cfg, (40, 42, 44, 92, 94, 4, 6, 0, 98))
        fine()
        stamp(0)
        ops = []
        fl = []
        for t in range(10):
            for j in range(6):
                for tt in range(2):
                    ac = v(V_ACC + 8 * (t & 1) + 4 * tt, 4)
                    o = dict(fmt=f"{MF16} {ac}, {v(V_A + 48 * bs + (j * 2 + tt) * 4, 4)}, {{W}}, {'0' if j == 0 else ac}", w=("a", (t * 6 + j) * 4), post=[])
                    if cfg.dbg & 32:
                        o["fmt"] = "s_nop 2"
                    if t > 0 and j == 1 and tt == 0:
                        def add(t=t):
                            fl[0:0] = cvt(t - 1)
                        o["post"].append(add)
                    ops.append(o)

        def cvt(t):
            ac = V_ACC + 8 * (t & 1)
            return [f"v_cvt_pk_bf16_f32 {v(V_PK + 4 * t + h)}, {v(ac + 4 * (h & 1) + 2 * (h >> 1))}, {v(ac + 4 * (h & 1) + 2 * (h >> 1) + 1)}" for h in range(4)]

        def store(t):
            assert not [x for x in fl if not callable(x) and x in cvt(t)]
            if t:
                A(f"s_add_u32 {s(S_OUT)}, {s(S_OUT)}, 8192")
            vm.issue(f"buffer_store_dwordx4 {v(V_PK + 4 * t, 4)}, {v(V_L16)}, {WS}, {s(S_OUT)} offen{LS}")
        st = Stream(A, lg, 0, 1, 0, 4)
        st.sq = [f"s_and_b32 {s(T)}, {s(S_S)}, {cfg.vr - 1}", f"s_lshl2_add_u32 {s(T)}, {s(S_L)}, {s(T)}", f"s_mul_i32 {s(S_OUT)}, {s(T)}, {VOX_G}",
                 f"s_add_u32 {s(S_OUT)}, {s(S_OUT)}, {s(S_OUT0)}",
                 f"s_lshl_b32 {s(S_CR)}, {s(S_L)}, 15", f"s_add_u32 {s(S_CR)}, {s(S_CR)}, {flag_row(F_VO, 0, 1)}", f"s_sub_i32 {s(S_TH)}, {s(S_S)}, {cfg.vr}"]
        fc = capture(fin_compute)

        def publish():
            A("s_waitcnt vmcnt(0)")
            vo_flag(LS)
        if cfg.pob:
            ops[cfg.poa]["post"].append(publish)
        cl = [lambda x=x: vm.issue(x, "dma") for x in v_dma(S_VS, 1 - bs)]
        if real:
            xs = xm_stores()
            cl[1:1] = [xm_flag, lambda: A(xs[0] + "\n" + xs[1])]
            cl += [lambda x=x: vm.issue(x, "fin") for x in fin_loads()]
        else:
            cl += [lambda: vm.issue(f"buffer_load_dword {v(V_FV)}, {v(V_FO)}, {WS}, {s(S_VR)} offen sc1")]
        if cfg.dbg & 64:
            cl = [lambda: A(xs[1])] + cl[-4:] if real else [lambda: A(f"v_mov_b32 {v(V_FV)}, 1")]
        cl.append(lambda: st.sq.extend(([x for x in fc if x.startswith("s_")] if real else []) + prep()))
        for k, x in enumerate(cl):
            ops[cfg.poa + 1 + cfg.pog * k]["post"].append(x)
        M, M2 = cfg.pom, cfg.pon
        csm = f"buffer_load_dword {v(V_CV)}, {v(V_CO)}, {WS}, {s(S_CR)} offen sc1"
        ops[M - cfg.pos]["post"].append(lambda: vm.issue(csm, "cs"))

        def chk():
            fine()
            vm.wait("cs")
            fine()
            if not cfg.pob:
                vo_flag(LS)
            if real:
                L = capture(lambda B: tagcheck(B, fir, V_T, S_FT))[:-1]
                L += [f"v_and_b32 {v(V_T)}, {s(S_GM)}, {v(V_T)}", f"v_mad_i32_i24 {v(V_T + 1)}, {v(V_T)}, -16, {v(V_CV)}", f"v_mad_i32_i24 {v(V_T + 1)}, {v(V_T)}, -64, {v(V_T + 1)}" if False else f"v_lshlrev_b32 {v(V_T + 1)}, 31, {v(V_T)}",
                      f"v_or_b32 {v(V_T + 1)}, {v(V_T + 1)}, {v(V_CV)}", f"v_cmp_ge_i32 vcc, {s(S_TH)}, {v(V_T + 1)}"]
                del L[-4]
            else:
                L = [f"v_min_u32_dpp {v(V_FV)}, {v(V_FV)}, {v(V_FV)} quad_perm:[1,0,3,2] row_mask:0xf bank_mask:0xf",
                     f"v_lshl_add_u32 {v(V_T + 4)}, {s(S_WAVE)}, 2, {v(V_LW)}",
                     lambda: lg.issue(f"ds_write_b32 {v(V_T + 4)}, {v(V_FV)} offset:{bs * 16}", "dw"),
                     f"v_cmp_ge_i32 vcc, {s(S_TH)}, {v(V_CV)}"]
            fl[0:0] = L
            chkl.extend(L)
        chkl = []

        def mid():
            assert not [x for x in fl if x in chkl]
            stamp(1)
            A.nf(f"s_cbranch_vccnz {slow}")
            A.label_nf(back)
            if real:
                fl.extend(x for x in fc if x.startswith("v_"))
            st.sq.extend(adopt())
        ops[M - 8]["post"].insert(0, chk)
        ops[M - 1]["post"].insert(0, mid)

        for t in range(9):
            ops[max(M + (t * (118 - M)) // 9, 12 * t + 18)]["post"].append(lambda t=t: store(t))

        def bar():
            lg.drain()
            A("s_barrier")
            stamp(2)
            lg.issue(f"ds_read_b32 {v(V_T + 5)}, {v(V_LW)} offset:{bs * 16}")
        ops[M2]["post"].insert(0, bar)
        for k in range(12):
            ops[M2 + 1 + 2 * k]["post"].append(lambda k=k: lg.issue(f"ds_read_b128 {v(V_A + 48 * (1 - bs) + 4 * k, 4)}, {v(V_L16)} offset:{(1 - bs) * 12288 + k * 1024}"))
        for k in (cfg.poa + 1, M + 1, M2 - 1, M2 + 1, 119):
            ops[k]["post"].insert(0, fine)
        st.run(ops, fl)
        A(f"s_mov_b64 {s(S_MV, 2)}, -1")
        A(f"s_add_u32 {s(S_PC)}, {s(S_TH)}, {cfg.vr + 1}")
        lg.drain()
        A(f"v_readfirstlane_b32 {s(S_LN)}, {v(V_T + 5)}")
        for x in fl + cvt(9):
            A(x)
        fl.clear()
        store(9)
        fine()
        fine.dump(S_I, cfg.t0, V_T)
        A(f"s_branch PO_{sx}{1 - bs}")
        A.label(slow)
        if real:
            xm_flag()
            g0 = A.newlabel("cg")
            A(f"v_cmp_ne_u32 vcc, 0, {v(V_T)}")
            A(f"s_cbranch_vccz {g0}")
            gate()
            A.label(g0)
        g1 = A.newlabel("cg")
        A.label(g1)
        A(csm)
        A("s_waitcnt vmcnt(0)")
        A(f"v_cmp_ge_i32 vcc, {s(S_TH)}, {v(V_CV)}")
        A(f"s_cbranch_vccz {back}")
        spin_back(A, g1, 1)
        A.label(virt)
        flush(LS)
        if real:
            gate()
            fin_compute(A)
            flush(LS)
        A(f"s_cmp_eq_u32 {s(S_I)}, {2 * N - 1}")
        A("s_cbranch_scc1 PO_END")
        for x in prep() + adopt():
            A(x)
        A(f"s_mov_b32 {s(S_LC)}, 0")
        A(f"s_mov_b32 {s(S_LN)}, 0")
        A(f"s_branch PO_{sx}{bs}")
    for sx, LS in ((("FN", ""), ("FR", ""), ("SN", " sc1"), ("SR", " sc1")) if cfg.slow else (("FN", cfg.LS), ("FR", cfg.LS))):
        body(sx, LS, 0)
        body(sx, LS, 1)
    A.label("PO_END")
    stamp.dump(V_T)
    A("s_endpgm")


def seg_dma(v16, src, lds, t):
    L = []
    for b in range(12):
        e = []
        if b % 4 == 0:
            e += [f"s_add_u32 m0, {s(lds)}, {b * 1024}", f"s_add_u32 {s(t)}, {s(src)}, {b * 1024}"]
        e.append(f"buffer_load_dwordx4 {v(v16)}, {WS}, {s(t)} offen offset:{(b % 4) * 1024} sc1 lds")
        L.append("\n".join(e))
    return L


def decide(A, lg, v_fv, v_lw, v_t, off):
    if v_fv is not None:
        A(f"v_cmp_eq_u32 vcc, 0, {v(v_fv)}")
    A(f"v_lshl_add_u32 {v(v_t + 1)}, {s(S_WAVE)}, 2, {v(v_lw)}")
    A("s_or_b32 vcc_lo, vcc_lo, vcc_hi")
    A(f"v_mov_b32 {v(v_t)}, vcc_lo")
    x = f"ds_write_b32 {v(v_t + 1)}, {v(v_t)} offset:{off}"
    A(x) if lg is None else lg.issue(x, "dw")


def park_spin(A, vo, vv, soff, sleep, wide=False):
    w0 = A.newlabel("w0")
    A(f"s_cmp_lg_u32 {s(S_WAVE)}, 0")
    A(f"s_cbranch_scc1 {w0}")
    flag_spin(A, vo, vv, soff, sleep, wide)
    A.label(w0)
    A("s_barrier")


def park_until(A, loads, check, sleep):
    w0, top = A.newlabel("w0"), A.newlabel("pu")
    A(f"s_cmp_lg_u32 {s(S_WAVE)}, 0")
    A(f"s_cbranch_scc1 {w0}")
    A.label(top)
    for x in loads:
        A(x)
    A("s_waitcnt vmcnt(0)")
    check()
    A(f"s_cbranch_vccz {w0}")
    spin_back(A, top, sleep)
    A.label(w0)
    A("s_barrier")


def cnt_setup(A, v_co, v_adj, vt, first, n, adj, first2=None, n2=0, adj2=0):
    A(f"v_min_u32 {v(v_co)}, {n + n2 - 1}, v0")
    A(f"v_mov_b32 {v(v_adj)}, {adj}")
    if n2:
        A(f"v_cmp_le_u32 vcc, {n}, {v(v_co)}")
        A(f"v_mov_b32 {v(vt)}, {adj2}")
        A(f"v_cndmask_b32 {v(v_adj)}, {v(v_adj)}, {v(vt)}, vcc")
        A(f"v_mov_b32 {v(vt)}, {first2 - n - first}")
        A(f"v_cndmask_b32 {v(vt)}, 0, {v(vt)}, vcc")
        A(f"v_add_u32 {v(v_co)}, {v(v_co)}, {v(vt)}")
    A(f"v_add_lshl_u32 {v(v_co)}, {v(v_co)}, {first}, 2")


def stats_reads(lg, va, r, tmp):
    L = [f"v_add_u32 {v(tmp)}, 0x800, {v(va)}"]
    for i in range(4):
        L.append(lambda i=i: lg.issue(f"ds_read2_b64 {v(r + 4 * i, 4)}, {v(va)} offset0:{64 * i} offset1:{64 * i + 32}"))
    L.append(lambda: lg.issue(f"ds_read2_b64 {v(r + 16, 4)}, {v(tmp)} offset0:0 offset1:32", "sr"))
    return L


def stats_sum(B, r, out, swap):
    for st in ((0, 10), (2, 12), (4, 14), (6, 16), (8, 18), (0, 2), (4, 6), (0, 4), (0, 8)):
        for k in range(2):
            B(f"v_add_f32 {v(r + st[0] + k)}, {v(r + st[0] + k)}, {v(r + st[1] + k)}")
    for k in range(2):
        B(f"v_mov_b32 {v(r + 2 + k)}, {v(r + k)}")
    for k in range(2):
        B(f"{swap} {v(r + k)}, {v(r + 2 + k)}")
    for k in range(2):
        B(f"v_add_f32 {v(out + k)}, {v(r + k)}, {v(r + 2 + k)}")


def gen_p1(A, cfg, nwg):
    V_L16, V_FO, V_FV, V_ONE, V_XA, V_WA, V_SA0, V_SA, V_CA, V_LW, V_STP = range(1, 12)
    V_T, V_ST, V_X, V_WR, V_ACC, V_CS = 12, 16, 20, 44, 56, 88
    L_X, L_CS = 65536, 65536 + 2 * XSEGS
    S_S, S_L, S_C, S_OUT, S_FLG, S_SRC, S_FIN, S_BUF, S_LW, S_DEF = range(50, 60)
    S_NSRC, S_NLD, S_PF = 68, 69, 70
    S_MF = 72

    def wloc(t, j):
        k = t * 20 + j
        if k % 15 in (3, 11):
            return ("l", (k // 15) * 2 + (k % 15) // 8)
        n = k - (k // 15) * 2 - (k % 15 > 3) - (k % 15 > 11)
        return ("a", n * 4) if n < 64 else ("v", 96 + (n - 64) * 4)

    A.label("ROLE_P1")
    A(f"v_lshlrev_b32 {v(V_L16)}, 4, v0")
    A(f"v_mov_b32 {v(V_ONE)}, 1")
    A(f"s_cmp_ge_u32 {s(S_ROLE)}, 48")
    A(f"s_cselect_b32 {s(S_L)}, 1, 0")
    A(f"s_mul_i32 {s(T)}, {s(S_L)}, 48")
    A(f"s_sub_u32 {s(S_C)}, {s(S_ROLE)}, {s(T)}")
    S_M, S_H = T + 6, T + 7
    A(f"s_lshr_b32 {s(T)}, {s(S_WAVE)}, 1")
    A(f"s_sub_u32 {s(T + 1)}, {s(S_C)}, 32")
    A(f"s_lshl1_add_u32 {s(T + 1)}, {s(T + 1)}, {s(T)}")
    A(f"s_cmp_lt_u32 {s(S_C)}, 32")
    A(f"s_cselect_b32 {s(S_M)}, {s(T)}, 2")
    A(f"s_cselect_b32 {s(S_H)}, {s(S_C)}, {s(T + 1)}")
    A(f"s_cselect_b32 {s(S_FLG)}, 0, {flag_row(F_V) - flag_row(F_QK) - 512}")
    A(f"s_lshl2_add_u32 {s(T)}, {s(S_C)}, {s(S_WAVE)}")
    A(f"s_lshl2_add_u32 {s(S_FLG)}, {s(T)}, {s(S_FLG)}")
    A(f"s_lshl_b32 {s(T)}, {s(S_L)}, 15")
    A(f"s_add_u32 {s(S_FLG)}, {s(S_FLG)}, {s(T)}")
    A(f"s_add_u32 {s(S_FLG)}, {s(S_FLG)}, {flag_row(F_QK)}")
    A(f"s_add_u32 {s(S_FIN)}, {s(T)}, {flag_row(F_XIN)}")
    A(f"s_mul_i32 {s(S_OUT)}, {s(S_H)}, {QK_H}")
    A(f"s_mul_i32 {s(T)}, {s(S_M)}, 12288")
    A(f"s_add_u32 {s(S_OUT)}, {s(S_OUT)}, {s(T)}")
    A(f"s_and_b32 {s(T)}, {s(S_WAVE)}, 1")
    A(f"s_mul_i32 {s(T)}, {s(T)}, 6144")
    A(f"s_add_u32 {s(S_OUT)}, {s(S_OUT)}, {s(T)}")
    A(f"s_add_u32 {s(S_OUT)}, {s(S_OUT)}, {QK}")
    A(f"s_mul_i32 {s(S_LW)}, {s(S_WAVE)}, 11264")
    A(f"s_mul_i32 {s(S_SRC)}, {s(S_L)}, {64 * XSEGS}")
    A(f"s_add_u32 {s(S_SRC)}, {s(S_SRC)}, {s(S_LW)}")
    A(f"s_add_u32 {s(S_SRC)}, {s(S_SRC)}, {XIN}")
    A(f"s_mul_i32 {s(T)}, {s(S_L)}, 16")
    A(f"s_add_u32 {s(T)}, {s(T)}, 3")
    A(f"v_min_u32 {v(V_FO)}, {s(T)}, v0")
    A(f"v_lshlrev_b32 {v(V_FO)}, 2, {v(V_FO)}")
    A(f"s_lshl_b32 {s(T)}, {s(S_WAVE)}, 14")
    A(f"v_add_u32 {v(V_WA)}, {s(T)}, {v(V_L16)}")
    A(f"v_bfe_u32 {v(V_T)}, v0, 4, 1")
    A(f"v_mul_u32_u24 {v(V_SA0)}, 2560, {v(V_T)}")
    A(f"v_lshrrev_b32 {v(V_T)}, 5, v0")
    A(f"v_lshl_add_u32 {v(V_SA0)}, {v(V_T)}, 7, {v(V_SA0)}")
    A(f"v_and_b32 {v(V_T)}, 15, v0")
    A(f"v_lshl_add_u32 {v(V_SA0)}, {v(V_T)}, 3, {v(V_SA0)}")
    A(f"v_add_u32 {v(V_SA0)}, 0xa000, {v(V_SA0)}")
    A(f"s_mul_i32 {s(T)}, {s(S_WAVE)}, 384")
    A(f"s_add_u32 {s(T)}, {s(T)}, {L_CS}")
    A(f"v_and_b32 {v(V_CA)}, 48, v0")
    A(f"v_add_u32 {v(V_CA)}, {s(T)}, {v(V_CA)}")
    A(f"v_mov_b32 {v(V_LW)}, {L_CS + 1536}")
    A(f"s_mov_b64 {s(S_MF, 2)}, 0")
    A(f"s_mov_b32 {s(S_PF)}, 0")
    init_barrier_arrive(A, V_T)
    if cfg.p1late:
        lab = A.newlabel("lt")
        A(f"s_cmp_eq_u32 {s(S_L)}, 0")
        A(f"s_cbranch_scc1 {lab}")
        init_barrier_wait(A, V_T, nwg, cfg)
        A(f"s_mov_b32 {s(T)}, {flag_row(F_QK)}")
        A(f"v_mov_b32 {v(V_T + 1)}, 0")
        park_spin(A, V_T + 1, V_T, T, 32)
        A.label(lab)
    LD = Loader(A, V_T, T + 3)
    LD.prep_a()
    V_SL = V_T + 6
    dense_lane(A, V_SL, V_T + 7, 384)
    A(f"s_lshr_b32 {s(T)}, {s(S_WAVE)}, 1")
    A(f"s_mul_i32 {s(T)}, {s(T)}, 24576")
    A(f"s_and_b32 {s(T + 1)}, {s(S_WAVE)}, 1")
    A(f"s_mul_i32 {s(T + 2)}, {s(T + 1)}, 192")
    A(f"s_add_u32 {s(T)}, {s(T)}, {s(T + 2)}")
    A(f"v_add_u32 {v(V_SL)}, {s(T)}, {v(V_SL)}")
    A(f"s_cmp_eq_u32 {s(S_M)}, 0")
    A(f"s_cselect_b32 {s(SRD_W)}, {s(P_WQ)}, {s(P_WK)}")
    A(f"s_cselect_b32 {s(SRD_W + 1)}, {s(P_WQ + 1)}, {s(P_WK + 1)}")
    A(f"s_cmp_eq_u32 {s(S_M)}, 2")
    A(f"s_cselect_b32 {s(SRD_W)}, {s(P_WV)}, {s(SRD_W)}")
    A(f"s_cselect_b32 {s(SRD_W + 1)}, {s(P_WV + 1)}, {s(SRD_W + 1)}")
    A(f"s_mov_b32 {s(SRD_W + 2)}, {640 * 12288}")
    A(f"s_mov_b32 {s(SRD_W + 3)}, 0x20000")
    A(f"s_mul_i32 {s(T + 1)}, {s(T + 1)}, {32 * 12288}")
    A(f"s_mul_i32 {s(T + 2)}, {s(S_H)}, 384")
    A(f"s_add_u32 {s(T + 2)}, {s(T + 2)}, {s(T + 1)}")

    def tl(lc):
        return ("v", V_X + lc[1] * 4) if lc[0] == "l" else lc
    for J in range(10):
        LD.add(LD.dma_a(T + 2, 64 * J), [(V_SL, [(reg(tl(wloc(t, 2 * J + jj)), 2 * u), (32 * jj + 16 * u) * 384 + t * 32) for jj in range(2) for t in range(6) for u in range(2)])])
    LD.emit()
    for i in range(16):
        A(f"ds_write_b128 {v(V_WA)}, {v(V_X + 4 * i, 4)} offset:{i * 1024}")
        if i % 8 == 7:
            A("s_waitcnt lgkmcnt(2)")
    for i in range(4):
        A(f"v_mov_b32 {v(V_T + i)}, 0x3f803f80")
    for t in range(6):
        ac = v(84 + 4 * (t % 3), 4)
        for j in range(20):
            A(f"{MF16} {ac}, {reg(tl(wloc(t, j)), 0, 4)}, {v(V_T, 4)}, {'0' if j == 0 else ac}")
        A(f"ds_write_b128 {v(V_CA)}, {ac} offset:{t * 64}")
    A("s_waitcnt lgkmcnt(0)")
    init_barrier_wait(A, V_T, nwg, cfg)
    A(f"s_mov_b32 {s(S_S)}, 0")
    A(f"s_mov_b32 {s(S_BUF)}, {L_X}")
    stamp = Stamp(A, cfg, S_S, V_STP, cfg.t0)
    stamp.init()
    A.label("P1_WAIT")
    park_spin(A, V_FO, V_FV, S_FIN, cfg.p1sl)
    A(f"s_add_u32 {s(S_NLD)}, {s(S_BUF)}, {s(S_LW)}")
    for x in seg_dma(V_L16, S_SRC, S_NLD, T + 5):
        A(x)
    A("s_waitcnt vmcnt(0)")
    A.label("P1_LOOP")
    lg = Cnt(A, "lgkmcnt", 15)
    vm = Cnt(A, "vmcnt", 60)
    A(f"v_add_u32 {v(V_XA)}, {s(S_BUF)}, {v(V_L16)}")
    A(f"v_add_u32 {v(V_SA)}, {s(S_BUF)}, {v(V_SA0)}")
    A(f"s_xor_b32 {s(S_BUF)}, {s(S_BUF)}, {L_X ^ (L_X + XSEGS)}")
    fine = Fine(A, cfg)
    fine()
    A("s_barrier")
    fine()
    stamp(0)

    def rd(n):
        f = n % 40
        lg.issue(f"ds_read_b128 {v(V_X + 4 * (n % 6), 4)}, {v(V_XA)} offset:{f * 1024}", ("x", n))
    for n in range(6):
        rd(n)
    ops = []
    for p in range(3):
        for j in range(20):
            for tt in range(2):
                n = p * 40 + j * 2 + tt
                for e in range(2):
                    ac = v(V_ACC + 16 * (p & 1) + 8 * tt + 4 * e, 4)
                    o = dict(fmt=f"{MF16} {ac}, {{W}}, {v(V_X + 4 * (n % 6), 4)}, {'0' if j == 0 else ac}", w=wloc(2 * p + e, j), need=[("x", n)], post=[], key=(p, j, e))
                    if e == 1 and n + 6 < 120:
                        o["post"].append(lambda n=n: rd(n + 6))
                    ops.append(o)
    fl = []

    def csread(p):
        return [lambda e=e: lg.issue(f"ds_read_b128 {v(V_CS + 4 * e, 4)}, {v(V_CA)} offset:{(2 * p + e) * 64}", ("cs", p)) for e in range(2)]

    def epi(p):
        L = [lambda: lg.wait(("cs", p))]
        for tt in range(2):
            x = V_ACC + 16 * (p & 1) + 8 * tt
            L += [f"v_fma_f32 {v(x + i)}, -{v(V_ST + 2 * tt)}, {v(V_CS + i)}, {v(x + i)}" for i in range(8)]
            L += [f"v_mul_f32 {v(x + i)}, {v(x + i)}, {v(V_ST + 2 * tt + 1)}" for i in range(8)]
            L += [f"v_cvt_pk_bf16_f32 {v(x + i)}, {v(x + 2 * i)}, {v(x + 2 * i + 1)}" for i in range(4)]
            so = S_OUT if p < 2 else T + 4
            L.append(lambda x=x, tt=tt, so=so: vm.issue(f"buffer_store_dwordx4 {v(x, 4)}, {v(V_L16)}, {WS}, {s(so)} offen offset:{((p & 1) * 2 + tt) * 1024} sc1"))
        return L
    R = V_ACC + 16

    def stats(B):
        stats_sum(B, R, V_ST, "v_permlane16_swap_b32")
        finish_stats(B, V_ST, V_ST + 1)
        for k in range(2):
            B(f"v_mov_b32 {v(V_ST + 2 + k)}, {v(V_ST + k)}")
        for k in range(2):
            B(f"v_permlane32_swap_b32 {v(V_ST + k)}, {v(V_ST + 2 + k)}")
    ops[4]["post"].append(lambda: fl.extend(stats_reads(lg, V_SA, R, V_T)))
    ops[24]["post"].append(lambda: fl.extend([lambda: lg.wait("sr")] + capture(stats) + csread(0)))

    def prev_flag():
        A("s_waitcnt vmcnt(0)")
        flag_store(A, V_ONE, V_L16, S_PF, mask=S_MF)
    ops[cfg.p1f]["post"].append(prev_flag)
    ops[83]["post"].append(lambda: fl.extend(epi(0) + csread(1)))
    ops[163]["post"].append(lambda: fl.extend(epi(1) + csread(2) + [f"s_add_u32 {s(T + 4)}, {s(S_OUT)}, 4096"]))
    D = cfg.p1d

    def sample():
        A(f"s_add_u32 {s(S_FIN)}, {s(S_FIN)}, 512")
        A(f"s_add_u32 {s(S_SRC)}, {s(S_SRC)}, {XSEGS}")
        vm.issue(f"buffer_load_dword {v(V_FV)}, {v(V_FO)}, {WS}, {s(S_FIN)} offen sc1", "fv")
    ops[D - cfg.p1s]["post"].append(sample)

    def dec1():
        vm.wait("fv")
        decide(A, lg, V_FV, V_LW, V_T + 1, 0)
    ops[D - 4]["post"].append(dec1)

    def dec2():
        lg.wait("dw")
        A("s_barrier")
        lg.issue(f"ds_read_b32 {v(V_T + 1)}, {v(V_LW)}", "dec")
    ops[D]["post"].append(dec2)

    def dec3():
        lg.wait("dec")
        A(f"v_readfirstlane_b32 {s(S_DEF)}, {v(V_T + 1)}")
        A(f"s_add_u32 {s(S_NLD)}, {s(S_BUF)}, {s(S_LW)}")
    ops[D + 10]["post"].append(dec3)
    ops[D + 11]["post"].append(lambda: A(f"s_cmp_eq_u32 {s(S_DEF)}, 0\ns_cselect_b32 {s(S_NSRC)}, {s(S_SRC)}, {OOR}"))
    for k, x in enumerate(seg_dma(V_L16, S_NSRC, S_NLD, T + 5)):
        ops[D + 12 + cfg.p1g * k]["post"].append(lambda x=x: vm.issue(x, "dma"))
    for k in (0, 40, cfg.p1f - 1, cfg.p1f + 1, 80, D - 5, D - 1, D + 1, D + 12, 200, 239):
        ops[k]["post"].insert(0, fine)
    Stream(A, lg, V_WR, 3, V_WA, 4).run(ops, fl, share=True)
    assert not fl
    stamp(1)
    for x in epi(2):
        x() if callable(x) else A(x)
    A(f"s_mov_b32 {s(S_PF)}, {s(S_FLG)}")
    A(f"s_mov_b64 {s(S_MF, 2)}, -1")
    A(f"s_add_u32 {s(S_FLG)}, {s(S_FLG)}, 512")
    A(f"s_add_u32 {s(S_OUT)}, {s(S_OUT)}, {QK_SEG}")
    stamp(2)
    A(f"s_add_u32 {s(S_S)}, {s(S_S)}, 1")
    A(f"s_cmp_eq_u32 {s(S_S)}, 64")
    A(f"s_cselect_b32 {s(S_DEF)}, 1, {s(S_DEF)}")
    A(f"s_cmp_lt_u32 {s(S_S)}, 3")
    A(f"s_cselect_b32 {s(T)}, 1, {s(S_DEF)}")
    fine()
    vm.wait("dma")
    fine()
    fine.dump(S_S, cfg.t0, V_T)
    A(f"s_cmp_eq_u32 {s(T)}, 0")
    A("s_cbranch_scc1 P1_LOOP")
    prev_flag()
    A(f"s_mov_b64 {s(S_MF, 2)}, 0")
    A(f"s_cmp_eq_u32 {s(S_DEF)}, 0")
    A("s_cbranch_scc1 P1_LOOP")
    A(f"s_cmp_lt_u32 {s(S_S)}, 64")
    A("s_cbranch_scc1 P1_WAIT")
    stamp.dump(V_T)
    A("s_endpgm")


GENS = dict(PO=gen_po, P1=gen_p1)
```

```python
from common2 import *
from asmlib import Ins

CS = 1600
T = 60
OWN = [(0, 1, 2), (3, 4, 5), (6, 7), (8, 9)]
OWNQ = [(0, 1, 2), (3, 4), (5, 6), (7, 8, 9)]


def sparse_lane(A, dst, tmp, stride, kind):
    b = (5, 4, 2) if kind == "d" else (3, 4, 2)
    A(f"v_bfe_u32 {v(dst)}, v0, 2, 1")
    A(f"v_bfe_u32 {v(tmp)}, v0, 4, 1")
    A(f"v_lshl_add_u32 {v(dst)}, {v(tmp)}, {b[0]}, {v(dst)}")
    A(f"v_bfe_u32 {v(tmp)}, v0, 3, 1")
    A(f"v_lshl_add_u32 {v(dst)}, {v(tmp)}, {b[1]}, {v(dst)}")
    A(f"v_lshrrev_b32 {v(tmp)}, 5, v0")
    A(f"v_lshl_add_u32 {v(dst)}, {v(tmp)}, {b[2]}, {v(dst)}")
    A(f"v_mul_u32_u24 {v(dst)}, {stride}, {v(dst)}")
    A(f"v_and_b32 {v(tmp)}, 3, v0")
    A(f"v_lshl_add_u32 {v(dst)}, {v(tmp)}, 3, {v(dst)}")


def capture_check(regs, tmp, tag):
    L = []
    tagcheck(L.append, regs, tmp, tag)
    return L


def idx_setup(A, dst, tmp):
    A(f"v_and_b32 {v(tmp)}, 1, v0")
    A(f"v_mul_u32_u24 {v(dst)}, 0xaaaa, {v(tmp)}")
    A(f"v_add_u32 {v(dst)}, 0x4444, {v(dst)}")


def loc_list(rl, rs, loc, tag, loc0, t):
    return [f"s_and_b32 {s(t)}, {s(rs)}, 1",
            f"s_lshl_b32 {s(loc)}, {s(rl)}, 1",
            f"s_add_u32 {s(loc)}, {s(loc)}, {s(t)}",
            f"s_lshl_b32 {s(loc)}, {s(loc)}, 17",
            f"s_add_u32 {s(loc)}, {s(loc)}, {s(loc0)}",
            f"s_bfe_u32 {s(tag)}, {s(rs)}, 0x10001"]


def _slots(seq, hold):
    t = 1
    for e in seq:
        if e.kind in ("salu", "nop"):
            t += e.ws
        else:
            t = max(t, hold) + (2 if (e.perm or e.trans) else 1)
    return t


def _parse(x):
    return [Ins(l) for l in x.split("\n")]


class Stream:
    def __init__(self, A, lg, ring, nring, vaddr, width):
        self.A, self.lg, self.ring, self.nring, self.va, self.w = A, lg, ring, nring, vaddr, width
        self.sq = []

    def flush(self):
        while self.sq:
            self.A(self.sq.pop(0))

    def prefetch(self, ops):
        for k, o in enumerate([o for o in ops if o["w"] and o["w"][0] == "l"][:self.nring]):
            for h in range(self.w // 4):
                self.lg.issue(f"ds_read_b128 {v(self.ring + k * self.w + 4 * h, 4)}, {v(self.va)} offset:{o['w'][1] * self.w * 256 + h * 1024}", "pf")

    def run(self, ops, fill, nv=1, pre=None, share=False, cap=4, resume=False):
        A, lg = self.A, self.lg
        cap0 = cap
        lds = [i for i, o in enumerate(ops) if o["w"] and o["w"][0] == "l"]
        alias, lastuse = {}, {}
        if share:
            first = {}
            for i in lds:
                alias[i] = first.setdefault(ops[i]["w"], i)
                lastuse[alias[i]] = i
            lds = sorted(set(alias.values()))
        slot = {}
        nxt = 0
        dq = []

        def fetch(upto):
            nonlocal nxt
            if nxt < len(lds) and (nxt < self.nring or lastuse.get(lds[nxt - self.nring], lds[nxt - self.nring]) < upto):
                o = ops[lds[nxt]]
                r = self.ring + (nxt % self.nring) * self.w
                slot[lds[nxt]] = r
                for h in range(self.w // 4):
                    dq.append((f"ds_read_b128 {v(r + 4 * h, 4)}, {v(self.va)} offset:{o['w'][1] * self.w * 256 + h * 1024}", ("w", lds[nxt])))
                nxt += 1

        def waits(i):
            o = ops[i]
            tags = list(o.get("need", ()))
            if o["w"] and o["w"][0] == "l" and not any(t == ("w", alias.get(i, i)) for _, t in dq):
                tags.append(("w", alias.get(i, i)))
            tags = [t for t in tags if t in lg.q]
            if tags:
                lg.wait(max(tags, key=lambda t: len(lg.q) - lg.q[::-1].index(t)))
        if resume:
            for _ in range(self.nring):
                fetch(0)
            dq.clear()
        if pre:
            for _ in range(self.nring):
                fetch(0)
            while dq:
                lg.issue(*dq.pop(0))
            pre()
        for i, o in enumerate(ops):
            if o["w"] and o["w"][0] == "l":
                i0 = alias.get(i, i)
                while i0 not in slot:
                    fetch(i)
                while any(t == ("w", i0) for _, t in dq):
                    lg.issue(*dq.pop(0))
                W = v(slot[i0], self.w)
            elif o["w"]:
                W = reg(o["w"], 0, self.w)
            else:
                W = ""
            waits(i)
            A(o["fmt"].format(W=W))
            hold = 3 if o["fmt"].startswith("v_smf") else 2
            cap = o.get("cap", cap0)
            mark = len(A.items)

            def em():
                return [it[1] for it in A.items[mark:] if it[0] == "i"]
            if i + 1 < len(ops):
                waits(i + 1)
            while self.sq and _slots(em(), hold) < hold:
                A(self.sq.pop(0))
            while _slots(em(), hold) < hold:
                k, seen = None, set()
                for n, x in enumerate(fill[:24]):
                    if callable(x):
                        break
                    ins = _parse(x)
                    regs = set().union(*[(e.rd | e.wr) for e in ins])
                    if all(e.kind == "salu" for e in ins):
                        if not (regs & seen) and (len(ins) == 1 or n == 0) and _slots(em() + ins, hold) <= cap and (len(ins) == 1 or not o.get("post")):
                            k = n
                        break
                    if any(e.kind == "salu" for e in ins):
                        break
                    seen |= {r for r in regs if r[0] not in "va"}
                if k is None:
                    break
                A(fill.pop(k))
            for p in o.get("post", ()):
                p()
            if o.get("fetch", True):
                if not dq:
                    fetch(i + 1)
                if dq and not any(e.kind == "ds" for e in em()) and _slots(em(), hold) < cap:
                    lg.issue(*dq.pop(0))
            while fill:
                x = fill[0]
                cur = em()
                ins = [Ins("ds_nop_b32 v0")] if callable(x) else _parse(x)
                if _slots(cur + ins, hold) > cap and not (_slots(ins, hold) > cap and len(cur) <= 1):
                    break
                fill.pop(0)
                x() if callable(x) else A(x)
            while self.sq and _slots(em() + _parse(self.sq[0]), hold) <= cap:
                A(self.sq.pop(0))
        self.flush()


def gen_cq(A, cfg, nwg):
    V_L16, V_IDX, V_LP, V_FO, V_FV, V_IW, V_TR, V_PS, V_PS2, V_KB, V_ST = range(1, 12)
    V_T, V_MF, V_ACC, V_RG, V_WA, V_MA, V_NI, V_T2 = 12, 20, 60, 84, 108, 109, 110, 111
    L_MEM, L_SP, L_IMG, L_QK = 81920, 92160, 96256, 103424
    S_I, S_LOC, S_TAG, S_NLOC, S_NTAG, S_NSRC, S_NFLG, S_2LOC, S_2TAG, S_2SRC = range(50, 60)
    S_2FLG, S_DEF, S_BUF, S_LOC0, S_SRC0, S_H, S_CS, S_L, S_S, S_LW = range(68, 78)
    S_MK = 78
    S_HI = 86
    S_ZM = 88

    LSET = [(0, 0, 0), (0, 0, 5), (0, 1, 3), (0, 1, 8), (0, 2, 1), (0, 2, 6), (1, 0, 4), (1, 0, 9), (1, 1, 2), (1, 2, 7)]

    def wloc(m, p, J):
        if (m, p, J) in LSET:
            return ("l", LSET.index((m, p, J)))
        n = [(mm, pp, JJ) for mm in range(2) for pp in range(3) for JJ in range(10) if (mm, pp, JJ) not in LSET].index((m, p, J))
        return ("a", n * 8) if n < 32 else ("v", 112 + (n - 32) * 8)

    A.label("ROLE_CQ")
    A(f"v_lshlrev_b32 {v(V_L16)}, 4, v0")
    idx_setup(A, V_IDX, V_T)
    A(f"s_mov_b32 {s(S_H)}, {s(S_ROLE)}")
    A(f"s_lshr_b32 {s(T)}, {s(S_H)}, 3")
    A(f"s_mul_i32 {s(S_LOC0)}, {s(T)}, {LOC_X}")
    A(f"s_add_u32 {s(S_LOC0)}, {s(S_LOC0)}, {LOC}")
    A(f"s_mul_i32 {s(S_LW)}, {s(S_WAVE)}, 6144")
    A(f"s_mul_i32 {s(S_SRC0)}, {s(S_H)}, {QK_H}")
    A(f"s_add_u32 {s(S_SRC0)}, {s(S_SRC0)}, {s(S_LW)}")
    A(f"s_add_u32 {s(S_SRC0)}, {s(S_SRC0)}, {QK}")
    A(f"s_mov_b32 {s(S_CS)}, {f32(192 ** -0.5 * math.log2(math.e))}")
    A(f"s_mov_b32 {s(S_HI)}, 0")
    A(f"s_mov_b32 {s(S_HI + 1)}, -1")
    A(f"s_mov_b32 {s(S_ZM)}, 0x00ff00ff")
    A(f"s_mov_b32 {s(S_ZM + 1)}, 0")
    A(f"v_mov_b32 {v(V_NI)}, 0xff800000")
    g_, c_ = V_T, V_T + 1
    A(f"v_lshrrev_b32 {v(g_)}, 4, v0")
    A(f"v_and_b32 {v(c_)}, 15, v0")
    for r in range(4):
        A(f"v_lshl_add_u32 {v(V_T + 2)}, {v(g_)}, 2, {r}")
        A(f"v_cmp_le_u32 {s(S_MK + 2 * r, 2)}, {v(V_T + 2)}, {v(c_)}")
    A(f"v_and_b32 {v(V_LP)}, 3, v0")
    A(f"v_lshlrev_b32 {v(V_LP)}, 3, {v(V_LP)}")
    A(f"v_bfe_u32 {v(V_T + 2)}, v0, 2, 1")
    A(f"v_lshl_add_u32 {v(V_LP)}, {v(V_T + 2)}, 10, {v(V_LP)}")
    A(f"v_min_u32 {v(V_FO)}, 3, v0")
    A(f"s_lshl_b32 {s(T)}, {s(S_H)}, 2")
    A(f"v_add_lshl_u32 {v(V_FO)}, {v(V_FO)}, {s(T)}, 2")
    A(f"v_lshrrev_b32 {v(V_IW)}, 5, v0")
    A(f"v_mul_u32_u24 {v(V_IW)}, {CS}, {v(V_IW)}")
    A(f"v_lshl_add_u32 {v(V_IW)}, {v(c_)}, 3, {v(V_IW)}")
    A(f"v_bfe_u32 {v(V_T + 2)}, v0, 4, 1")
    A(f"v_lshl_add_u32 {v(V_IW)}, {v(V_T + 2)}, 2, {v(V_IW)}")
    A(f"s_mul_i32 {s(T)}, {s(S_WAVE)}, 384")
    A(f"s_add_u32 {s(T)}, {s(T)}, {L_IMG}")
    A(f"v_add_u32 {v(V_IW)}, {s(T)}, {v(V_IW)}")
    A(f"v_lshrrev_b32 {v(V_TR)}, 2, v0")
    A(f"v_lshlrev_b32 {v(V_TR)}, 3, {v(V_TR)}")
    A(f"v_and_b32 {v(V_T + 2)}, 1, v0")
    A(f"v_mul_u32_u24 {v(V_T + 2)}, {CS}, {v(V_T + 2)}")
    A(f"v_add_u32 {v(V_TR)}, {v(V_TR)}, {v(V_T + 2)}")
    A(f"v_add_u32 {v(V_TR)}, {L_IMG}, {v(V_TR)}")
    A(f"v_bfe_u32 {v(V_T + 2)}, v0, 1, 1")
    A(f"v_add_u32 {v(V_T2)}, {2 * CS}, {v(V_TR)}")
    A(f"v_lshl_add_u32 {v(V_TR)}, {v(V_T + 2)}, 8, {v(V_TR)}")
    A(f"s_mul_i32 {s(T)}, {s(S_WAVE)}, 20480")
    A(f"v_add_u32 {v(V_WA)}, {s(T)}, {v(V_L16)}")
    A(f"v_add_u32 {v(V_MA)}, {L_MEM}, {v(V_L16)}")
    A(f"s_and_b32 {s(T)}, {s(S_H)}, 7")
    w0, wj = A.newlabel("cq"), A.newlabel("cq")
    A(f"s_cmp_lg_u32 {s(S_WAVE)}, 0")
    A(f"s_cbranch_scc1 {w0}")
    A(f"v_and_b32 {v(V_T + 2)}, 7, v0")
    A(f"v_bfe_u32 {v(V_T + 3)}, v0, 3, 1")
    A(f"v_and_b32 {v(V_T + 4)}, 1, {v(g_)}")
    A(f"s_lshl_b32 {s(T + 1)}, {s(T)}, 9")
    A(f"s_add_u32 {s(T + 1)}, {s(T + 1)}, {PM_O}")
    A(f"v_lshl_add_u32 {v(V_PS)}, {v(V_T + 2)}, 5, {s(T + 1)}")
    A(f"v_lshl_add_u32 {v(V_PS)}, {v(V_T + 3)}, 4, {v(V_PS)}")
    A(f"v_lshl_add_u32 {v(V_PS)}, {v(V_T + 4)}, 3, {v(V_PS)}")
    A(f"v_lshrrev_b32 {v(V_T + 5)}, 5, v0")
    A(f"v_lshl_add_u32 {v(V_PS)}, {v(V_T + 5)}, 8, {v(V_PS)}")
    A(f"s_lshr_b32 {s(T + 1)}, {s(T)}, 1")
    A(f"s_lshl_b32 {s(T + 1)}, {s(T + 1)}, 8")
    A(f"s_and_b32 {s(T + 2)}, {s(T)}, 1")
    A(f"s_lshl3_add_u32 {s(T + 1)}, {s(T + 2)}, {s(T + 1)}")
    A(f"s_add_u32 {s(T + 1)}, {s(T + 1)}, {PM_O + 4096}")
    A(f"v_lshl_add_u32 {v(V_PS2)}, {v(V_T + 2)}, 5, {s(T + 1)}")
    A(f"v_lshl_add_u32 {v(V_PS2)}, {v(V_T + 4)}, 4, {v(V_PS2)}")
    A(f"v_lshlrev_b32 {v(V_T2)}, 10, {v(V_T + 3)}")
    A(f"v_lshl_add_u32 {v(V_T2)}, {v(g_)}, 8, {v(V_T2)}")
    A(f"v_lshl_add_u32 {v(V_T2)}, {v(V_T + 2)}, 4, {v(V_T2)}")
    A(f"v_add_u32 {v(V_T2)}, {L_SP}, {v(V_T2)}")
    A(f"s_branch {wj}")
    A.label(w0)
    A(f"s_sub_u32 {s(T + 3)}, {s(S_WAVE)}, 1")
    A(f"s_min_u32 {s(T + 3)}, {s(T + 3)}, 1")
    A(f"s_lshl_b32 {s(T + 1)}, {s(T)}, 1")
    A(f"s_add_u32 {s(T + 1)}, {s(T + 1)}, {s(T + 3)}")
    A(f"s_lshl_b32 {s(T + 1)}, {s(T + 1)}, 10")
    A(f"s_add_u32 {s(T + 1)}, {s(T + 1)}, {PX_O}")
    A(f"v_add_u32 {v(V_PS)}, {s(T + 1)}, {v(V_L16)}")
    A(f"v_lshrrev_b32 {v(V_T + 3)}, 5, v0")
    A(f"v_lshlrev_b32 {v(V_T + 3)}, 3, {v(V_T + 3)}")
    A(f"v_lshl_add_u32 {v(V_PS2)}, {v(c_)}, 4, {v(V_T + 3)}")
    A(f"s_lshr_b32 {s(T + 1)}, {s(T)}, 2")
    A(f"s_lshl_b32 {s(T + 1)}, {s(T + 1)}, 1")
    A(f"s_add_u32 {s(T + 1)}, {s(T + 1)}, {s(T + 3)}")
    A(f"s_lshl_b32 {s(T + 1)}, {s(T + 1)}, 10")
    A(f"s_and_b32 {s(T + 2)}, {s(T)}, 3")
    A(f"s_lshl_b32 {s(T + 2)}, {s(T + 2)}, 8")
    A(f"s_add_u32 {s(T + 1)}, {s(T + 1)}, {s(T + 2)}")
    A(f"s_add_u32 {s(T + 1)}, {s(T + 1)}, {PX_O + 16384}")
    A(f"v_add_u32 {v(V_PS2)}, {s(T + 1)}, {v(V_PS2)}")
    A.label(wj)
    A(f"v_mov_b32 {v(V_T + 4)}, -1")
    for k in range(4):
        A(f"s_add_u32 {s(T)}, {s(S_LOC0)}, {k * LOC_SLOT}")
        A(f"buffer_store_dword {v(V_T + 4)}, {v(V_PS)}, {WS}, {s(T)} offen sc1")
        A(f"buffer_store_dword {v(V_T + 4)}, {v(V_PS2)}, {WS}, {s(T)} offen sc1")
    init_barrier_arrive(A, V_T)
    LD = Loader(A, V_T, T + 3)
    LD.prep_a()
    V_SL = V_T + 6
    sparse_lane(A, V_SL, V_T + 7, 384, "d")
    A(f"s_mul_i32 {s(T)}, {s(S_WAVE)}, 96")
    A(f"v_add_u32 {v(V_SL)}, {s(T)}, {v(V_SL)}")
    A(f"s_cmp_lt_u32 {s(S_WAVE)}, 2")
    A(f"s_cselect_b32 {s(SRD_W)}, {s(P_WQ)}, {s(P_WK)}")
    A(f"s_cselect_b32 {s(SRD_W + 1)}, {s(P_WQ + 1)}, {s(P_WK + 1)}")
    A(f"s_mov_b32 {s(SRD_W + 2)}, {640 * 12288}")
    A(f"s_mov_b32 {s(SRD_W + 3)}, 0x20000")
    A(f"s_and_b32 {s(T)}, {s(S_WAVE)}, 1")
    A(f"s_mul_i32 {s(T)}, {s(T)}, {32 * 12288}")
    A(f"s_mul_i32 {s(T + 1)}, {s(S_H)}, 384")
    A(f"s_add_u32 {s(T + 2)}, {s(T)}, {s(T + 1)}")
    for J in range(10):
        reads = []
        for m in range(2):
            for p in range(3):
                lc = wloc(m, p, J)
                if lc[0] == "l":
                    lc = ("v", V_MF + lc[1] * 8)
                for H in range(2):
                    for u in range(2):
                        reads.append((reg(lc, 4 * H + 2 * u), m * 24576 + (8 * H + 2 * u) * 384 + p * 32))
        LD.add(LD.dma_a(T + 2, 64 * J), [(V_SL, reads)])
    LD.emit()
    for i in range(20):
        A(f"ds_write_b128 {v(V_WA)}, {v(V_MF + 4 * i, 4)} offset:{i * 1024}")
        if i % 8 == 7:
            A("s_waitcnt lgkmcnt(2)")
    A("s_waitcnt lgkmcnt(0)")
    init_barrier_wait(A, V_T, nwg, cfg)

    def ahead(d, loc, tag, src, flg):
        L = [f"s_add_u32 {s(T + 2)}, {s(S_I)}, {d}", f"s_min_u32 {s(T + 2)}, {s(T + 2)}, 127"]
        L += item_list(T + 2, S_L, S_S, cfg.LAG, cfg.first, T)
        L += loc_list(S_L, S_S, loc, tag, S_LOC0, T)
        if cfg.ring:
            L += [f"s_and_b32 {s(src)}, {s(S_S)}, {cfg.ring - 1}", f"s_mul_i32 {s(src)}, {s(src)}, {QK_SEG}"]
        else:
            L += [f"s_mul_i32 {s(src)}, {s(S_S)}, {QK_SEG}"]
        L += [f"s_add_u32 {s(src)}, {s(src)}, {s(S_SRC0)}"]
        if cfg.lstride:
            L += [f"s_mul_i32 {s(T)}, {s(S_L)}, {cfg.lstride}", f"s_add_u32 {s(src)}, {s(src)}, {s(T)}"]
        L += [f"s_lshl_b32 {s(flg)}, {s(S_L)}, 6", f"s_add_u32 {s(flg)}, {s(flg)}, {s(S_S)}", f"s_lshl_b32 {s(flg)}, {s(flg)}, 9",
              f"s_add_u32 {s(flg)}, {s(flg)}, {flag_row(F_QK)}"]
        return L

    def dma_list(src, buf):
        L = []
        for i in range(6):
            e = []
            if i == 0:
                e.append(f"s_add_u32 m0, {s(buf)}, {s(S_LW)}")
            if i == 4:
                e.append(f"s_add_u32 m0, m0, 4096")
                e.append(f"s_add_u32 {s(T + 7)}, {s(src)}, 4096")
            e.append(f"buffer_load_dwordx4 {v(V_L16)}, {WS}, {s(src if i < 4 else T + 7)} offen offset:{(i % 4) * 1024} sc1 lds")
            L.append("\n".join(e))
        return L

    A(f"s_mov_b32 {s(S_I)}, 0")
    A(f"s_mov_b32 {s(S_BUF)}, {L_QK}")
    for x in ahead(0, S_LOC, S_TAG, S_NSRC, S_NFLG):
        A(x)
    flag_spin(A, V_FO, V_FV, S_NFLG, 4)
    for x in dma_list(S_NSRC, S_BUF):
        A(x)
    for x in ahead(1, S_NLOC, S_NTAG, S_NSRC, S_NFLG):
        A(x)
    A(f"buffer_load_dword {v(V_FV)}, {v(V_FO)}, {WS}, {s(S_NFLG)} offen sc1")
    stamp = Stamp(A, cfg, S_I, V_ST, (cfg.t0 if cfg.t0 < cfg.LAG else cfg.t0 * 2 - cfg.LAG))
    stamp.init()
    modes = (("F", ""), ("S", " sc1")) if cfg.slow else (("F", cfg.LS),)
    for sx, _ in modes:
        if sx == "F" and cfg.slow:
            A(f"s_cmp_lg_u32 {s(S_MODE)}, 0")
            A("s_cbranch_scc1 CQ_SEL_S")
        A.label("CQ_SEL_" + sx)
        for w in range(4):
            A(f"s_cmp_eq_u32 {s(S_WAVE)}, {w}")
            A(f"s_cbranch_scc1 CQ_{sx}{w}")

    def acc(m, p):
        return V_ACC + m * 12 + p * 4

    def body(w, sx, LS):
        lg = Cnt(A, "lgkmcnt", 15)
        own = OWNQ[w]
        A.label(f"CQ_{sx}{w}")
        A(f"s_add_u32 {s(T + 6)}, {s(S_LOC)}, {own[0] * 1024}")
        lds_ = [f"buffer_load_dwordx4 {v(V_MF + 4 * f, 4)}, {v(V_L16)}, {WS}, {s(T + 6)} offen offset:{k * 1024} sc1" for k, f in enumerate(own)]
        for x in lds_:
            A(x)
        A("s_waitcnt vmcnt(0)")
        A.label(f"CQ_{sx}{w}L")
        for i in range(0, 24, 2):
            A(f"v_mov_b64 {v(V_ACC + i, 2)}, 0")
        A(f"v_add_u32 {v(V_KB)}, {s(S_BUF)}, {v(V_L16)}")
        A(f"s_xor_b32 {s(S_BUF)}, {s(S_BUF)}, {L_QK ^ (L_QK + 24576)}")
        st = Stream(A, lg, V_RG, 2, V_WA, 8)

        def op(m, p, J):
            return dict(fmt=f"{SMF} {v(acc(m, p), 4)}, {v(V_MF + 4 * J, 4)}, {{W}}, {v(V_IDX)}", w=wloc(m, p, J), post=[], need=[("m", J)])
        others = [(own[-1] + 1 + k) % 10 for k in range(10 - len(own))]
        first = ([(0, p, J) for J in own for p in range(3) if (0, p, J) not in LSET] + [(1, p, J) for J in own for p in range(3) if (1, p, J) not in LSET])[:cfg.nown]
        ops = [op(*x) for x in first]
        nown = len(ops)
        pend = []
        for m in range(2):
            for p in range(3):
                rest = [J for J in list(own) + others if (m, p, J) not in first]
                lj = [J for J in rest if (m, p, J) in LSET]
                rj = [J for J in rest if J not in lj]
                for k, J in enumerate(lj):
                    rj.insert(((2 * k + 1) * len(rest)) // (2 * len(lj)), J)
                ops += [op(m, p, J) for J in rj]
                pend.append(len(ops))
        for o in ops[pend[cfg.cq5]:pend[2] + 4]:
            o["cap"] = 5
        st.prefetch(ops)
        nst = 2 if 0 < w < 3 else 0
        ppoll(A, lds_, [V_MF + 4 * f + d for f in own for d in (0, 2)], S_TAG, V_T, depth=cfg.pg, gap=cfg.pgap,
              light=lambda: light_poll(A, V_LP, T + 6, 0, S_TAG, V_T, cfg.lsl), issued=nst)

        def spec():
            A(f"s_add_u32 {s(T + 6)}, {s(S_NLOC)}, {own[0] * 1024}")
            for x in lds_:
                A(x)
        stamp(0)
        fine = Fine(A, cfg)
        fine()
        vm = Cnt(A, "vmcnt", 60)
        vm.q = ["pp"]
        for k, f in enumerate(own):
            ops[0]["post"].append(lambda f=f: lg.issue(f"ds_write_b128 {v(V_MA)}, {v(V_MF + 4 * f, 4)} offset:{f * 1024}", "mw"))

        def bar1():
            fine()
            lg.drain()
            A("s_barrier")
            fine()
        kb = cfg.kb
        ops[kb]["post"].append(bar1)
        for k, f in enumerate(others):
            ops[kb + max(k - 1, 0)]["post"].append(lambda f=f: lg.issue(f"ds_read_b128 {v(V_MF + 4 * f, 4)}, {v(V_MA)} offset:{f * 1024}", ("m", f)))

        def epi(m, p):
            x = acc(m, p)
            return [f"v_add_f32 {v(x)}, {v(x)}, {v(x + 1)}", f"v_add_f32 {v(x + 2)}, {v(x + 2)}, {v(x + 3)}", f"v_cvt_pk_bf16_f32 {v(x)}, {v(x)}, {v(x + 2)}",
                    lambda: lg.issue(f"ds_write_b32 {v(V_IW)}, {v(x)} offset:{p * 128 + m * 2 * CS}", "iw")]
        fl = []
        KX = [V_RG + 16, V_RG + 20, V_T + 4]
        Q2, SP = V_ACC, V_T
        st.sq = ahead(2, S_2LOC, S_2TAG, S_2SRC, S_2FLG)
        d1 = kb + 7 + w

        def early():
            A(f"v_cmp_eq_u32 vcc, 0, {v(V_FV)}")
            st.sq.append(f"s_cmp_lg_u64 vcc, 0\ns_cselect_b32 {s(S_DEF)}, 1, 0")
        ops[1]["post"].append(early)
        for k, x in enumerate(dma_list(S_NSRC, S_BUF)):
            ops[d1 + cfg.dsp * k]["post"].append(lambda x=x: vm.issue(x))

        def flagload():
            st.flush()
            vm.issue(f"buffer_load_dword {v(V_FV)}, {v(V_FO)}, {WS}, {s(S_2FLG)} offen sc1")
        ops[d1 + cfg.dsp * 2 + 2]["post"].append(flagload)
        for k in range(5):
            def done(k=k):
                fl.extend(epi(k // 3, k % 3))
                if k == 2:
                    fl.extend(lambda jp=jp: lg.issue(f"ds_read_b128 {v(KX[jp], 4)}, {v(V_KB)} offset:{12288 + (4 * jp + w) * 1024}", "kx") for jp in range(3))
            ops[pend[k] + 1]["post"].append(done)
        bx = pend[2] + cfg.bx

        def barx():
            while lg.done.count("iw") < 3:
                x = fl.pop(0)
                x() if callable(x) else A(x)
            lg.wait("iw")
            A("s_barrier")
            fl[0:0] = [lambda jp=jp, u=u: lg.issue(f"ds_read_b64_tr_b16 {v(Q2 + 4 * jp + 2 * u, 2)}, {v(V_TR)} offset:{jp * 512 + u * 128}", ("q", jp))
                       for jp in range(3) for u in range(2)]
        ops[bx]["post"].insert(0, barx)
        assert bx <= pend[3] + 1
        for k in (nown, pend[2], bx + 1, len(ops) - 1):
            ops[k]["post"].insert(0, fine)
        for jp in range(3):
            def chk(jp=jp):
                assert lg.done.count(("q", jp)) == 2 and lg.done.count("kx") == 3
            at = len(ops) - cfg.se
            ops[at - 1]["post"].append(chk)
            ops.insert(at, dict(fmt=f"{MF16} {v(SP, 4)}, {v(KX[jp], 4)}, {v(Q2 + 4 * jp, 4)}, {'0' if jp == 0 else v(SP, 4)}", w=None, need=[("q", jp), "kx"], post=[]))
        spw = lambda: lg.issue(f"ds_write_b128 {v(V_MA)}, {v(SP, 4)} offset:{L_SP - L_MEM + w * 1024}", "iw")
        st.run(ops, fl, cap=cfg.cqcap, resume=True)
        for x in fl + ([spw] if cfg.se >= 2 else []) + epi(1, 2) + ([spw] if cfg.se < 2 else []):
            x() if callable(x) else A(x)
        vm.wait("pp")
        pslot = {}
        if 0 < w < 3:
            tt = w - 1 if not cfg.dbg & 128 else 0
            kxo = [12288 + (j * 2 + kt) * 1024 for j in range(6) for kt in range(tt + 1)]
            offs = [(j * 2 + tt) * 1024 for j in range(6)] + kxo[:4]
            for k in (0, 6, 7, 1, 8, 9, 2, 3, 4, 5)[:cfg.npre]:
                pslot[k] = V_MF + 4 * k
                lg.issue(f"ds_read_b128 {v(V_MF + 4 * k, 4)}, {v(V_KB)} offset:{offs[k]}", ("x", k))
        fine()
        lg.wait("iw")
        A("s_barrier")
        fine()
        stamp(1)
        if w == 0:
            K2, Z, XB = V_RG, V_ACC + 16, V_MF + 20
            X = [V_MF + 16 + r for r in range(4)]
            for jp in range(3):
                for u in range(2):
                    lg.issue(f"ds_read_b64_tr_b16 {v(K2 + 4 * jp + 2 * u, 2)}, {v(V_TR)} offset:{2 * CS + jp * 512 + u * 128}", ("k", jp))
            lg.issue(f"ds_read_b128 {v(X[0], 4)}, {v(V_T2)}")
            lg.issue(f"ds_read_b128 {v(XB, 4)}, {v(V_T2)} offset:{2048 + 128}", "sp")
            for jp in range(3):
                lg.wait(("k", jp))
                A(f"{MF16} {v(Z, 4)}, {v(K2 + 4 * jp, 4)}, {v(Q2 + 4 * jp, 4)}, {'0' if jp == 0 else v(Z, 4)}")
            fine()
            lg.wait("sp")
            for r in range(4):
                A(f"v_add_f32 {v(X[r])}, {v(X[r])}, {v(XB + r)}")
            A(f"v_max3_f32 {v(V_T)}, {v(X[0])}, {v(X[1])}, {v(X[2])}")
            A(f"v_permlane32_swap_b32 {v(Z)}, {v(Z + 1)}")
            A(f"v_permlane32_swap_b32 {v(Z + 2)}, {v(Z + 3)}")
            A(f"v_add_f32_dpp {v(Z)}, {v(Z + 1)}, {v(Z)} row_ror:8 row_mask:0xf bank_mask:0x3")
            A(f"v_add_f32_dpp {v(Z)}, {v(Z + 2)}, {v(Z + 3)} row_ror:8 row_mask:0xf bank_mask:0xc")
            A(f"v_max3_f32 {v(V_T)}, {v(V_T)}, {v(X[3])}, {v(Z)}")
            A(f"v_max_f32_dpp {v(V_T)}, {v(V_T)}, {v(V_T)} row_ror:8 row_mask:0xf bank_mask:0xf")
            xred(A, "v_max_f32", V_T, V_T + 1)
            A(f"v_mul_f32 {v(V_T)}, {s(S_CS)}, {v(V_T)}")
            S = X + [Z]
            for r in S:
                A(f"v_fma_f32 {v(r)}, {v(r)}, {s(S_CS)}, -{v(V_T)}")
            for r in S:
                A(f"v_exp_f32 {v(r)}, {v(r)}")
            A(f"v_add_f32 {v(V_T)}, {v(S[0])}, {v(S[1])}")
            A(f"v_add_f32 {v(V_T + 1)}, {v(S[2])}, {v(S[3])}")
            A(f"v_add_f32 {v(V_T)}, {v(V_T)}, {v(S[4])}")
            A(f"v_mov_b32 {v(Z + 1)}, {v(Z)}")
            A(f"v_add_f32 {v(V_T)}, {v(V_T)}, {v(V_T + 1)}")
            A(f"v_permlane32_swap_b32 {v(Z)}, {v(Z + 1)}")
            A(f"v_add_f32_dpp {v(V_T)}, {v(V_T)}, {v(V_T)} row_ror:8 row_mask:0xf bank_mask:0xf")
            xred(A, "v_add_f32", V_T, V_T + 1)
            A(f"v_rcp_f32 {v(V_T)}, {v(V_T)}")
            A(f"v_pk_mul_f32 {v(Z, 2)}, {v(Z, 2)}, {v(V_T, 2)} op_sel_hi:[1,0]")
            A(f"v_pk_mul_f32 {v(X[0], 2)}, {v(X[0], 2)}, {v(V_T, 2)} op_sel_hi:[1,0]")
            A(f"v_pk_mul_f32 {v(X[2], 2)}, {v(X[2], 2)}, {v(V_T, 2)} op_sel_hi:[1,0]")
            A(f"v_cvt_pk_bf16_f32 {v(V_T + 4)}, {v(Z)}, {v(Z + 1)}")
            A(f"v_cvt_pk_bf16_f32 {v(V_T + 2)}, {v(X[0])}, {v(X[1])}")
            A(f"v_cvt_pk_bf16_f32 {v(V_T + 3)}, {v(X[2])}, {v(X[3])}")
            A(f"v_mov_b32_dpp {v(V_T + 5)}, {v(V_T + 4)} row_ror:8 row_mask:0xf bank_mask:0xf")
            A(f"v_and_or_b32 {v(V_T + 2)}, {v(V_T + 2)}, -2, {s(S_TAG)}")
            A(f"buffer_store_dwordx2 {v(V_T + 2, 2)}, {v(V_PS)}, {WS}, {s(S_LOC)} offen{LS}")
            A(f"v_and_or_b32 {v(V_T + 4)}, {v(V_T + 4)}, -2, {s(S_TAG)}")
            A(f"s_mov_b64 exec, {s(S_ZM, 2)}")
            A(f"buffer_store_dwordx2 {v(V_T + 4, 2)}, {v(V_PS2)}, {WS}, {s(S_LOC)} offen{LS}")
            A("s_mov_b64 exec, -1")
            spec()
        elif w < 3:
            F = V_RG
            X0, X1, M = V_ACC, V_ACC + 4, V_ACC + 8
            later = [k for k in (0, 6, 7, 1, 8, 9, 2, 3, 4, 5) if k not in pslot]
            for j in range(6):
                for u in range(2):
                    lg.issue(f"ds_read_b64_tr_b16 {v(F + 4 * j + 2 * u, 2)}, {v(V_T2)} offset:{j * 256 + u * 128}", ("f", j))
                if later:
                    k = later.pop(0)
                    pslot[k] = V_MF + 4 * k
                    lg.issue(f"ds_read_b128 {v(V_MF + 4 * k, 4)}, {v(V_KB)} offset:{offs[k]}", ("x", k))
            assert not later
            free = [V_ACC + 12, V_ACC + 16, V_ACC + 20]
            nk = 4

            def more():
                nonlocal nk
                while free and nk < len(kxo):
                    r = free.pop(0)
                    pslot[6 + nk] = r
                    lg.issue(f"ds_read_b128 {v(r, 4)}, {v(V_KB)} offset:{kxo[nk]}", ("x", 6 + nk))
                    nk += 1
            more()
            ki = 0
            for j in range(6):
                lg.wait(("x", j))
                for kt in range(tt + 1):
                    ac = X1 if kt else X0
                    lg.wait(("x", 6 + ki))
                    A(f"{MF16} {v(ac, 4)}, {v(pslot[6 + ki], 4)}, {v(pslot[j], 4)}, {'0' if j == 0 else v(ac, 4)}")
                    free.append(pslot[6 + ki])
                    ki += 1
                    more()
                lg.wait(("f", j))
                A(f"{MF16} {v(M, 4)}, {v(F + 4 * j, 4)}, {v(pslot[j], 4)}, {'0' if j == 0 else v(M, 4)}")
            fine()
            if cfg.spec == 0:
                spec()
            D = X1 if tt else X0
            for r in range(4):
                A(f"v_cndmask_b32 {v(D + r)}, {v(V_NI)}, {v(D + r)}, {s(S_MK + 2 * r, 2)}")
            for r in range(2):
                A(f"v_cndmask_b32 {v(M + r)}, {v(M + r)}, {v(M + 2 + r)}, {s(S_HI, 2)}")
            S = [X0 + r for r in range(4)] + ([X1 + r for r in range(4)] if tt else []) + [M, M + 1]
            A(f"v_max3_f32 {v(V_T)}, {v(S[0])}, {v(S[1])}, {v(S[2])}")
            for k in range(3, len(S) - 1, 2):
                A(f"v_max3_f32 {v(V_T)}, {v(V_T)}, {v(S[k])}, {v(S[k + 1])}")
            A(f"v_max_f32 {v(V_T)}, {v(V_T)}, {v(S[-1])}")
            xred(A, "v_max_f32", V_T, V_T + 1)
            A(f"v_mul_f32 {v(V_T)}, {s(S_CS)}, {v(V_T)}")
            for k in range(0, len(S), 2):
                A(f"v_pk_fma_f32 {v(S[k], 2)}, {v(S[k], 2)}, {s(S_CS, 2)}, {v(V_T, 2)} op_sel_hi:[1,0,0] neg_lo:[0,0,1] neg_hi:[0,0,1]")
            for r in S:
                A(f"v_exp_f32 {v(r)}, {v(r)}")
            A(f"v_pk_add_f32 {v(V_T, 2)}, {v(S[0], 2)}, {v(S[2], 2)}")
            for k in range(4, len(S), 2):
                A(f"v_pk_add_f32 {v(V_T, 2)}, {v(V_T, 2)}, {v(S[k], 2)}")
            A(f"v_add_f32 {v(V_T)}, {v(V_T)}, {v(V_T + 1)}")
            if cfg.spec == 1:
                spec()
            xred(A, "v_add_f32", V_T, V_T + 1)
            A(f"v_rcp_f32 {v(V_T)}, {v(V_T)}")
            if cfg.spec == 2:
                spec()
            for k in range(len(S) - 2, -1, -2):
                A(f"v_pk_mul_f32 {v(S[k], 2)}, {v(S[k], 2)}, {v(V_T, 2)} op_sel_hi:[1,0]")
            for h in range(2):
                A(f"v_cvt_pk_bf16_f32 {v(V_T + 2 + h)}, {v(M)}, {v(M + 1)}")
            PK = V_T + 4
            for h in range(4):
                x = X0 + 4 * (h & 1) + 2 * (h >> 1)
                A(f"v_cvt_pk_bf16_f32 {v(PK + h)}, {v(x)}, {v(x + 1)}" if tt or not h & 1 else f"v_mov_b32 {v(PK + h)}, 0")
            A(f"v_and_or_b32 {v(PK)}, {v(PK)}, -2, {s(S_TAG)}")
            A(f"buffer_store_dwordx4 {v(PK, 4)}, {v(V_PS)}, {WS}, {s(S_LOC)} offen{LS}")
            A(f"v_permlane16_swap_b32 {v(V_T + 2)}, {v(V_T + 3)}")
            A(f"v_and_or_b32 {v(V_T + 2)}, {v(V_T + 2)}, -2, {s(S_TAG)}")
            A(f"buffer_store_dwordx2 {v(V_T + 2, 2)}, {v(V_PS2)}, {WS}, {s(S_LOC)} offen{LS}")
        else:
            spec()
        fine()
        lg.drain()
        fine.dump(S_I, cfg.t0, V_T)
        stamp(2)
        nod = A.newlabel("nd")
        A(f"s_cmp_eq_u32 {s(S_DEF)}, 0")
        A(f"s_cbranch_scc1 {nod}")
        flag_spin(A, V_FO, V_T, S_NFLG, 2)
        for x in dma_list(S_NSRC, S_BUF):
            A(x)
        A("s_waitcnt vmcnt(0)")
        A.label(nod)
        for d_, s_ in ((S_LOC, S_NLOC), (S_TAG, S_NTAG), (S_NLOC, S_2LOC), (S_NTAG, S_2TAG), (S_NSRC, S_2SRC), (S_NFLG, S_2FLG)):
            A(f"s_mov_b32 {s(d_)}, {s(s_)}")
        A(f"s_add_u32 {s(S_I)}, {s(S_I)}, 1")
        A(f"s_cmp_lt_u32 {s(S_I)}, 128")
        A(f"s_cbranch_scc1 CQ_{sx}{w}L")
        A("s_branch CQ_END")
    for sx, LS in modes:
        for w in range(4):
            body(w, sx, LS)
    A.label("CQ_END")
    stamp.dump(V_T)
    A("s_endpgm")


def xred(A, op, r, t):
    A(f"v_mov_b32 {v(t)}, {v(r)}")
    A(f"v_permlane32_swap_b32 {v(r)}, {v(t)}")
    A(f"{op} {v(r)}, {v(r)}, {v(t)}")
    A(f"v_mov_b32 {v(t)}, {v(r)}")
    A(f"v_permlane16_swap_b32 {v(r)}, {v(t)}")
    A(f"{op} {v(r)}, {v(r)}, {v(t)}")


def gen_cv(A, cfg, nwg):
    V_L16, V_IDX, V_LP, V_IW, V_IW2, V_TR, V_VS, V_WA, V_MA, V_MW, V_ST = range(1, 12)
    V_T, V_MF, V_AV, V_AO, V_RG = 12, 20, 60, 72, 112
    L_MEM, L_IMG = 106496, 116736
    C2 = 832
    S_I, S_LOC, S_TAG, S_NLOC, S_NTAG, S_LOC0, S_H, S_L, S_S, S_F0 = range(50, 60)

    LSET = [(0, 2, J) for J in range(10)] + [(1, 0, 2), (1, 1, 2), (1, 2, 2)]

    def wloc(kind, t, J):
        if (kind, t, J) in LSET:
            return ("l", LSET.index((kind, t, J)))
        n = [x for x in [(0, tt, JJ) for JJ in range(10) for tt in range(3)] + [(1, tt, JJ) for JJ in range(3) for tt in range(10)] if x not in LSET].index((kind, t, J))
        return ("a", n * 8) if n < 32 else ("v", 136 + (n - 32) * 8)

    A.label("ROLE_CV")
    A(f"v_lshlrev_b32 {v(V_L16)}, 4, v0")
    idx_setup(A, V_IDX, V_T)
    A(f"s_mov_b32 {s(S_H)}, {s(S_ROLE)}")
    A(f"s_lshr_b32 {s(T)}, {s(S_H)}, 3")
    A(f"s_mul_i32 {s(S_LOC0)}, {s(T)}, {LOC_X}")
    A(f"s_add_u32 {s(S_LOC0)}, {s(S_LOC0)}, {LOC}")
    A(f"s_mul_i32 {s(S_F0)}, {s(S_WAVE)}, 3")
    A(f"s_min_u32 {s(S_F0)}, {s(S_F0)}, 7")
    A(f"s_lshl_b32 {s(S_F0)}, {s(S_F0)}, 10")
    A(f"v_and_b32 {v(V_LP)}, 3, v0")
    A(f"v_lshlrev_b32 {v(V_LP)}, 3, {v(V_LP)}")
    A(f"v_bfe_u32 {v(V_T + 2)}, v0, 2, 1")
    A(f"v_lshl_add_u32 {v(V_LP)}, {v(V_T + 2)}, 10, {v(V_LP)}")
    g_, c_ = V_T, V_T + 1
    A(f"v_lshrrev_b32 {v(g_)}, 4, v0")
    A(f"v_and_b32 {v(c_)}, 15, v0")
    A(f"v_mul_u32_u24 {v(V_IW2)}, {C2}, {v(g_)}")
    A(f"v_lshl_add_u32 {v(V_IW2)}, {v(c_)}, 3, {v(V_IW2)}")
    A(f"s_lshl_b32 {s(T)}, {s(S_WAVE)}, 7")
    A(f"s_add_u32 {s(T)}, {s(T)}, {L_IMG}")
    A(f"v_add_u32 {v(V_IW)}, {s(T)}, {v(V_IW2)}")
    A(f"s_lshr_b32 {s(T)}, {s(S_WAVE)}, 1")
    A(f"s_lshl_b32 {s(T)}, {s(T)}, 7")
    A(f"s_and_b32 {s(T + 1)}, {s(S_WAVE)}, 1")
    A(f"s_lshl_b32 {s(T + 1)}, {s(T + 1)}, 1")
    A(f"s_add_u32 {s(T)}, {s(T)}, {s(T + 1)}")
    A(f"s_add_u32 {s(T)}, {s(T)}, {L_IMG + 512}")
    A(f"v_add_u32 {v(V_IW2)}, {s(T)}, {v(V_IW2)}")
    A(f"v_bfe_u32 {v(V_TR)}, v0, 2, 3")
    A(f"v_lshrrev_b32 {v(V_T + 3)}, 5, v0")
    A(f"v_lshl_add_u32 {v(V_TR)}, {v(V_T + 3)}, 4, {v(V_TR)}")
    A(f"v_lshlrev_b32 {v(V_TR)}, 3, {v(V_TR)}")
    A(f"v_and_b32 {v(V_T + 3)}, 3, v0")
    A(f"v_mul_u32_u24 {v(V_T + 3)}, {C2}, {v(V_T + 3)}")
    A(f"v_add_u32 {v(V_TR)}, {v(V_TR)}, {v(V_T + 3)}")
    A(f"v_add_u32 {v(V_TR)}, {L_IMG}, {v(V_TR)}")
    A(f"s_mul_i32 {s(T)}, {s(S_WAVE)}, 26624")
    A(f"v_add_u32 {v(V_WA)}, {s(T)}, {v(V_L16)}")
    A(f"v_add_u32 {v(V_MA)}, {L_MEM}, {v(V_L16)}")
    A(f"v_add_u32 {v(V_MW)}, {s(S_F0)}, {v(V_MA)}")

    A(f"s_and_b32 {s(T)}, {s(S_H)}, 7")
    A(f"s_lshl_b32 {s(T)}, {s(T)}, 8")
    A(f"s_mul_i32 {s(T + 1)}, {s(S_WAVE)}, 20480")
    A(f"s_add_u32 {s(T)}, {s(T)}, {s(T + 1)}")
    A(f"s_add_u32 {s(T)}, {s(T)}, {VM_O}")
    A(f"v_lshl_add_u32 {v(V_VS)}, {v(c_)}, 4, {s(T)}")
    A(f"v_bfe_u32 {v(V_T + 2)}, v0, 4, 1")
    A(f"v_lshl_add_u32 {v(V_VS)}, {v(V_T + 2)}, 3, {v(V_VS)}")
    A(f"v_lshrrev_b32 {v(V_T + 2)}, 5, v0")
    A(f"v_lshl_add_u32 {v(V_VS)}, {v(V_T + 2)}, 11, {v(V_VS)}")
    A(f"v_mov_b64 {v(V_MF, 2)}, -1")
    for k in range(4):
        for i in range(5):
            A(f"s_add_u32 {s(T)}, {s(S_LOC0)}, {k * LOC_SLOT + i * 4096}")
            A(f"buffer_store_dwordx2 {v(V_MF, 2)}, {v(V_VS)}, {WS}, {s(T)} offen sc1")
    init_barrier_arrive(A, V_T)
    LD = Loader(A, V_T, T + 3)
    LD.prep_a()
    V_SL, V_SL2, V_SO = V_T + 6, V_T + 7, V_RG + 16
    sparse_lane(A, V_SL2, V_SO, 384, "d")
    A(f"s_lshl_b32 {s(T)}, {s(S_WAVE)}, 6")
    A(f"v_add_u32 {v(V_SL)}, {s(T)}, {v(V_SL2)}")
    A(f"s_lshl_b32 {s(T)}, {s(S_WAVE)}, 5")
    A(f"v_add_u32 {v(V_SL2)}, {s(T)}, {v(V_SL2)}")
    sparse_lane(A, V_SO, V_MF, 1280, "e")
    A(f"s_mul_i32 {s(T)}, {s(S_WAVE)}, 320")
    A(f"v_add_u32 {v(V_SO)}, {s(T)}, {v(V_SO)}")
    make_srd(A, SRD_W, P_WV, 640 * 12288)
    A(f"s_mul_i32 {s(T)}, {s(S_WAVE)}, {32 * 12288}")
    A(f"s_mul_i32 {s(T + 1)}, {s(S_H)}, 384")
    A(f"s_add_u32 {s(T + 2)}, {s(T)}, {s(T + 1)}")
    A(f"s_mul_i32 {s(T)}, {s(S_WAVE)}, 10240")
    A(f"s_mul_i32 {s(T + 1)}, {s(S_H)}, {192 * 1280}")
    A(f"s_add_u32 {s(T + 1)}, {s(T)}, {s(T + 1)}")

    def tmploc(lc):
        return ("v", V_MF + lc[1] * 8) if lc[0] == "l" else lc
    for sg in range(5):
        rd = [[], []]
        for J2 in range(2):
            for t in range(3):
                for H in range(2):
                    for u in range(2):
                        rd[t // 2].append((reg(tmploc(wloc(0, t, 2 * sg + J2)), 4 * H + 2 * u), (64 * J2 + 8 * H + 2 * u) * 384 + (t * 32 if t < 2 else 256)))
        LD.add(LD.dma_a(T + 2, 128 * sg), [(V_SL, rd[0]), (V_SL2, rd[1])])
    for sg in range(6):
        reads = []
        for t in range(10):
            for u in range(2):
                reads.append((reg(tmploc(wloc(1, t, sg >> 1)), 4 * (sg & 1) + 2 * u), 2 * u * 1280 + t * 32))
        LD.add(LD.dma_b(T + 1, sg * 40960, V_L16, pre=(lambda: make_srd(A, SRD_W, P_WO, 6144 * 1280)) if sg == 0 else None), [(V_SO, reads)])
    LD.emit()
    for i in range(26):
        A(f"ds_write_b128 {v(V_WA)}, {v(V_MF + 4 * i, 4)} offset:{i * 1024}")
        if i % 8 == 7:
            A("s_waitcnt lgkmcnt(2)")
    A("s_waitcnt lgkmcnt(0)")
    init_barrier_wait(A, V_T, nwg, cfg)

    def ahead(d, loc, tag):
        L = [f"s_add_u32 {s(T + 2)}, {s(S_I)}, {d}"]
        return L + item_list(T + 2, S_L, S_S, cfg.LAG, cfg.first, T) + loc_list(S_L, S_S, loc, tag, S_LOC0, T)
    A(f"s_mov_b32 {s(S_I)}, 0")
    for x in ahead(0, S_LOC, S_TAG):
        A(x)
    stamp = Stamp(A, cfg, S_I, V_ST, (cfg.t0 if cfg.t0 < cfg.LAG else cfg.t0 * 2 - cfg.LAG))
    stamp.init()
    modes = (("F", ""), ("S", " sc1")) if cfg.slow else (("F", cfg.LS),)
    for sx, _ in modes:
        if sx == "F" and cfg.slow:
            A(f"s_cmp_lg_u32 {s(S_MODE)}, 0")
            A("s_cbranch_scc1 CV_SEL_S")
        A.label("CV_SEL_" + sx)
        for w in range(4):
            A(f"s_cmp_eq_u32 {s(S_WAVE)}, {w}")
            A(f"s_cbranch_scc1 CV_{sx}{w}")

    def body(w, sx, LS):
        lg = Cnt(A, "lgkmcnt", 15)
        own = OWN[w]
        others = [(own[-1] + 1 + k) % 10 for k in range(10 - len(own))]
        A.label(f"CV_{sx}{w}")
        st = Stream(A, lg, V_RG, 3, V_WA, 8)
        VF = V_MF + 4 * own[0] if w < 2 else V_MF + 24
        ops = [dict(fmt=f"{SMF} {v(V_AV + 4 * t, 4)}, {v(V_MF + 4 * J, 4)}, {{W}}, {v(V_IDX)}", w=wloc(0, t, J), need=[("m", J)], post=[])
               for J in list(own) + others for t in range(3)]
        fl = []

        def epi(i):
            pk = V_AV + 2 * i
            L = []
            for e in range(2):
                x = V_AO + 8 * i + 4 * e
                L += [f"v_add_f32 {v(x)}, {v(x)}, {v(x + 1)}", f"v_add_f32 {v(x + 2)}, {v(x + 2)}, {v(x + 3)}", f"v_cvt_pk_bf16_f32 {v(pk + e)}, {v(x)}, {v(x + 2)}"]
            return L + [f"s_add_u32 {s(T + 7)}, {s(S_LOC)}, {i * 4096}", f"v_permlane32_swap_b32 {v(pk)}, {v(pk + 1)}", f"v_and_or_b32 {v(pk)}, {v(pk)}, -2, {s(S_TAG)}",
                        f"buffer_store_dwordx2 {v(pk, 2)}, {v(V_VS)}, {WS}, {s(T + 7)} offen{LS}"]
        for i in range(5):
            for J in range(3):
                for e in range(2):
                    t = 2 * i + e
                    o = dict(fmt=f"{SMF} {v(V_AO + 4 * t, 4)}, {v(VF + 4 * J, 4)}, {{W}}, {v(V_IDX)}", w=wloc(1, t, J), need=[("v", J)], post=[], cap=cfg.cvcap)
                    if i > 0 and J == 0 and e == 1:
                        o["post"].append(lambda i=i: fl.extend(epi(i - 1)))
                    ops.append(o)
        st.prefetch(ops)
        for i in range(0, 52, 2):
            A(f"v_mov_b64 {v(V_AV + i, 2)}, 0")
        A(f"s_add_u32 {s(T + 6)}, {s(S_LOC)}, {own[0] * 1024}")
        lg.drain()
        lds_ = [f"buffer_load_dwordx4 {v(V_MF + 4 * f, 4)}, {v(V_L16)}, {WS}, {s(T + 6)} offen offset:{k * 1024} sc1" for k, f in enumerate(own)]
        ppoll(A, lds_, [V_MF + 4 * f + d for f in own for d in (0, 2)], S_TAG, V_T, depth=cfg.pg, gap=cfg.pgap,
              light=lambda: light_poll(A, V_LP, T + 6, 0, S_TAG, V_T, cfg.lsl))
        stamp(0)
        fine = Fine(A, cfg)
        fine()
        for f in own:
            ops[0]["post"].append(lambda f=f: lg.issue(f"ds_write_b128 {v(V_MA)}, {v(V_MF + 4 * f, 4)} offset:{f * 1024}"))

        def bar1():
            fine()
            lg.drain()
            A("s_barrier")
            fine()
        ops[1]["post"].append(bar1)
        for k, f in enumerate(others):
            ops[1 + max(k - 2, 0) * 2]["post"].append(lambda f=f: lg.issue(f"ds_read_b128 {v(V_MF + 4 * f, 4)}, {v(V_MA)} offset:{f * 1024}", ("m", f)))
        st.sq = ahead(1, S_NLOC, S_NTAG)

        def mid():
            fine()
            A("s_waitcnt vmcnt(0)")
            for t in range(3):
                x = V_AV + 4 * t
                A(f"v_add_f32 {v(x)}, {v(x)}, {v(x + 1)}")
                A(f"v_add_f32 {v(x + 2)}, {v(x + 2)}, {v(x + 3)}")
                if t == 1:
                    A(f"v_cvt_pk_bf16_f32 {v(V_T)}, {v(V_AV)}, {v(V_AV + 4)}")
                    A(f"v_cvt_pk_bf16_f32 {v(V_T + 1)}, {v(V_AV + 2)}, {v(V_AV + 6)}")
                    lg.issue(f"ds_write_b64 {v(V_IW)}, {v(V_T, 2)}")
            A(f"v_cvt_pk_bf16_f32 {v(V_T + 2)}, {v(V_AV + 8)}, {v(V_AV + 10)}")
            lg.issue(f"ds_write_b16 {v(V_IW2)}, {v(V_T + 2)}")
            lg.issue(f"ds_write_b16_d16_hi {v(V_IW2)}, {v(V_T + 2)} offset:4")
            lg.drain()
            A("s_barrier")
            for J in range(3):
                for u in range(2):
                    lg.issue(f"ds_read_b64_tr_b16 {v(VF + 4 * J + 2 * u, 2)}, {v(V_TR)} offset:{J * 256 + u * 64}", ("v", J))
        ops[29]["post"].append(mid)
        for k in (3 * len(own), 30, 59):
            ops[k]["post"].insert(0, fine)
        st.run(ops, fl, resume=True)
        for x in fl + epi(4):
            A(x)
        fine()
        lg.drain()
        fine.dump(S_I, cfg.t0, V_T)
        stamp(1)
        A(f"s_mov_b32 {s(S_LOC)}, {s(S_NLOC)}")
        A(f"s_mov_b32 {s(S_TAG)}, {s(S_NTAG)}")
        A(f"s_add_u32 {s(S_I)}, {s(S_I)}, 1")
        A(f"s_cmp_lt_u32 {s(S_I)}, 128")
        A(f"s_cbranch_scc1 CV_{sx}{w}")
        A("s_branch CV_END")
    for sx, LS in modes:
        for w in range(4):
            body(w, sx, LS)
    A.label("CV_END")
    stamp.dump(V_T)
    A("s_endpgm")


def stats_lane(A, xs, t):
    A(f"v_add_f32 {v(t)}, {v(xs[0])}, {v(xs[1])}")
    A(f"v_mul_f32 {v(t + 1)}, {v(xs[0])}, {v(xs[0])}")
    for i in range(1, len(xs)):
        if i >= 2:
            A(f"v_add_f32 {v(t)}, {v(t)}, {v(xs[i])}")
        A(f"v_fmac_f32 {v(t + 1)}, {v(xs[i])}, {v(xs[i])}")


def stats_groups(A, t):
    for op in ("v_permlane32_swap_b32", "v_permlane16_swap_b32"):
        A(f"v_mov_b64 {v(t + 2, 2)}, {v(t, 2)}")
        A(f"{op} {v(t)}, {v(t + 2)}")
        A(f"{op} {v(t + 1)}, {v(t + 3)}")
        A(f"v_pk_add_f32 {v(t, 2)}, {v(t, 2)}, {v(t + 2, 2)}")


def gen_ow(A, cfg, nwg):
    V_L16, V_LP, V_FO, V_FV, V_ONE, V_ST = range(1, 7)
    V_TA = 8
    V_TM = 11
    V_PR = 13
    V_PX = 17
    V_XS = 21
    V_MS = 22
    V_OS = 24
    V_IDX = 26
    V_PW = 31
    V_T = 32
    V_VM = 44
    V_P = 68
    V_E = 88
    V_C = 112
    V_Y = 136
    V_B = 160
    V_PS = 184
    V_O = 204
    L_PM, L_PX = 0, 4096
    S_S, S_LOC, S_TAG, S_NLOC, S_NTAG, S_LOC0, S_G, S_L, S_CG, S_XP0 = range(50, 60)
    S_XP, S_OX0, S_OX, S_VX0, S_OT, S_FVO, S_TA, S_TC, S_FN, S_NV = range(68, 78)
    S_S1 = 94
    S_PO = 93
    S_Q = 78
    S_LO = 82
    S_XA = 84

    A.label("ROLE_OW")
    A(f"v_lshlrev_b32 {v(V_L16)}, 4, v0")
    A(f"v_mov_b32 {v(V_ONE)}, 1")
    A(f"s_lshr_b32 {s(S_G)}, {s(S_ROLE)}, 3")
    A(f"s_and_b32 {s(S_L)}, {s(S_ROLE)}, 1")
    A(f"s_bfe_u32 {s(S_CG)}, {s(S_ROLE)}, 0x20001")
    A(f"s_mul_i32 {s(S_LOC0)}, {s(S_G)}, {LOC_X}")
    A(f"s_lshl_b32 {s(T)}, {s(S_L)}, 18")
    A(f"s_add_u32 {s(S_LOC0)}, {s(S_LOC0)}, {s(T)}")
    A(f"s_add_u32 {s(S_LOC0)}, {s(S_LOC0)}, {LOC}")
    A(f"s_lshl_b32 {s(S_TA)}, {s(S_WAVE)}, 1")
    A(f"s_add_u32 {s(S_TA)}, {s(S_TA)}, 2")
    A(f"s_cmp_eq_u32 {s(S_WAVE)}, 0")
    A(f"s_cselect_b32 {s(S_TA)}, 0, {s(S_TA)}")
    A(f"s_cselect_b32 {s(S_TC)}, 2, 3")
    A(f"s_mov_b32 {s(S_LO)}, 0x33333333")
    A(f"s_mov_b32 {s(S_LO + 1)}, 0x33333333")
    idx_setup(A, V_IDX, V_T)
    g_, tok, hf, mt, mh = V_T, V_T + 1, V_T + 2, V_T + 10, V_T + 11
    A(f"v_bfe_u32 {v(g_)}, v0, 2, 2")
    A(f"v_and_b32 {v(tok)}, 7, v0")
    A(f"v_bfe_u32 {v(hf)}, v0, 3, 1")
    A(f"v_lshrrev_b32 {v(mt)}, 4, v0")
    A(f"v_and_b32 {v(mh)}, 1, v0")
    A(f"v_lshl_add_u32 {v(mt)}, {v(mt)}, 1, {v(mh)}")
    A(f"v_bfe_u32 {v(mh)}, v0, 1, 1")
    A(f"v_lshlrev_b32 {v(V_XS)}, 3, v0")
    A(f"v_add_u32 {v(V_XS)}, 0x1000, {v(V_XS)}")
    A(f"s_mul_i32 {s(T + 1)}, {s(S_CG)}, 10")
    A(f"s_add_u32 {s(S_TA)}, {s(S_TA)}, {s(T + 1)}")
    A(f"s_add_u32 {s(S_TC)}, {s(S_TC)}, {s(T + 1)}")
    A(f"s_lshl_b32 {s(T)}, {s(S_TA)}, 13")
    A(f"v_add_u32 {v(V_TA)}, {s(T)}, {v(V_L16)}")
    A(f"v_add_u32 {v(V_TA + 1)}, 0x2000, {v(V_TA)}")
    A(f"s_lshl_b32 {s(T)}, {s(S_TC)}, 13")
    A(f"v_add_u32 {v(V_TA + 2)}, {s(T)}, {v(V_L16)}")
    for k, tr in enumerate((S_TA, S_TC)):
        A(f"s_lshl_b32 {s(T)}, {s(tr)}, 11")
        A(f"s_add_u32 {s(T)}, {s(T)}, {VM_O}")
        A(f"v_add_u32 {v(V_TM + k)}, {s(T)}, {v(V_L16)}")
        A(f"s_lshr_b32 {s(T)}, {s(tr)}, 1")
        A(f"s_lshl_b32 {s(T)}, {s(T)}, 11")
        A(f"s_and_b32 {s(T + 1)}, {s(T)}, 0xffffe000")
        A(f"s_add_u32 {s(T)}, {s(T)}, {s(T + 1)}")
        A(f"s_and_b32 {s(T + 1)}, {s(tr)}, 1")
        A(f"s_lshl3_add_u32 {s(T)}, {s(T + 1)}, {s(T)}")
        A(f"v_add_u32 {v(V_OS + k)}, {s(T)}, {v(V_L16)}")
        A(f"s_lshr_b32 {s(T)}, {s(tr)}, 2")
        A(f"s_lshl_b32 {s(T)}, {s(T)}, 10")
        A(f"s_lshl4_add_u32 {s(T)}, {s(T + 1)}, {s(T)}")
        A(f"s_and_b32 {s(T + 1)}, {s(tr)}, 2")
        A(f"s_lshl2_add_u32 {s(T)}, {s(T + 1)}, {s(T)}")
        A(f"v_lshl_add_u32 {v(V_MS + k)}, {v(g_)}, 8, {s(T)}")
        A(f"v_lshl_add_u32 {v(V_MS + k)}, {v(mt)}, 5, {v(V_MS + k)}")
        if k == 0:
            A(f"v_lshl_add_u32 {v(V_MS)}, {v(mh)}, 4, {v(V_MS)}")
    A(f"s_lshl_b32 {s(T)}, {s(S_TA)}, 11")
    A(f"s_lshl_b32 {s(T + 1)}, {s(S_TC)}, 11")
    A(f"s_cmp_lt_u32 {s(S_WAVE)}, 2")
    A(f"s_cselect_b32 {s(T + 1)}, {s(T + 1)}, {s(T)}")
    A(f"v_lshl_add_u32 {v(V_LP)}, {v(hf)}, 11, {s(T)}")
    A(f"v_mov_b32 {v(V_T + 3)}, {s(T + 1)}")
    A(f"v_cmp_gt_u32 vcc, 16, v0")
    A(f"v_cndmask_b32 {v(V_LP)}, {v(V_T + 3)}, {v(V_LP)}, vcc")
    A(f"v_lshl_add_u32 {v(V_LP)}, {v(tok)}, 8, {v(V_LP)}")
    A(f"v_add_u32 {v(V_LP)}, {VM_O + 248}, {v(V_LP)}")
    for q in range(4):
        A(f"s_add_u32 {s(T)}, {s(S_WAVE)}, {q}")
        A(f"s_and_b32 {s(T)}, {s(T)}, 3")
        A(f"s_lshl_b32 {s(S_Q + q)}, {s(T)}, 11")
        A(f"s_lshl_b32 {s(T + 1)}, {s(T)}, 10")
        A(f"v_add_u32 {v(V_PR + q)}, {s(T + 1)}, {v(V_L16)}")
        A(f"s_lshl_b32 {s(T + 1)}, {s(T)}, 12")
        A(f"v_add_u32 {v(V_PX + q)}, {s(T + 1)}, {v(V_L16)}")
    A(f"v_add_u32 {v(V_PW)}, 0x4000, {v(V_PR)}")
    A(f"s_lshl_b32 {s(T)}, {s(S_G)}, 7")
    A(f"s_lshl_b32 {s(T + 1)}, {s(S_CG)}, 2")
    A(f"s_add_u32 {s(T)}, {s(T)}, {s(T + 1)}")
    A(f"v_lshl_add_u32 {v(V_FO)}, {v(tok)}, 4, {s(T)}")
    A(f"s_lshl_b32 {s(T)}, {s(S_L)}, 15")
    A(f"s_add_u32 {s(S_FVO)}, {s(T)}, {flag_row(F_VO)}")
    A(f"s_add_u32 {s(T + 1)}, {s(T + 1)}, {s(S_WAVE)}")
    A(f"s_lshl_b32 {s(S_FN)}, {s(S_G)}, 7")
    A(f"s_lshl2_add_u32 {s(S_FN)}, {s(T + 1)}, {s(S_FN)}")
    A(f"s_add_u32 {s(S_FN)}, {s(S_FN)}, {s(S_FVO)}")
    A(f"s_add_u32 {s(S_FN)}, {s(S_FN)}, 512")
    A(f"s_lshl_b32 {s(S_XP0)}, {s(T + 1)}, 14")
    A(f"s_mul_i32 {s(T)}, {s(S_L)}, {2 * XP_SLOT}")
    A(f"s_add_u32 {s(S_XP0)}, {s(S_XP0)}, {s(T)}")
    A(f"s_add_u32 {s(S_XP0)}, {s(S_XP0)}, {XP}")
    A(f"s_mul_i32 {s(S_OX0)}, {s(S_L)}, {OXP_L}")
    A(f"s_mul_i32 {s(T)}, {s(S_G)}, {OXP_SRC}")
    A(f"s_add_u32 {s(S_OX0)}, {s(S_OX0)}, {s(T)}")
    A(f"s_add_u32 {s(S_OX0)}, {s(S_OX0)}, {OXP}")
    A(f"s_lshl1_add_u32 {s(T)}, {s(S_G)}, {s(S_L)}")
    A(f"s_mul_i32 {s(S_VX0)}, {s(T)}, {4 * VOX_G}")
    A(f"s_add_u32 {s(S_VX0)}, {s(S_VX0)}, {VOX}")
    make_srd(A, SRD_W, P_MEM0, 10240)
    A(f"v_mul_u32_u24 {v(V_T + 4)}, 1280, {v(mt)}")
    A(f"v_lshl_add_u32 {v(V_T + 4)}, {v(g_)}, 3, {v(V_T + 4)}")
    A(f"v_lshl_add_u32 {v(V_T + 5)}, {v(mh)}, 5, {v(V_T + 4)}")
    A(f"s_lshl_b32 {s(T)}, {s(S_TA)}, 5")
    A(f"buffer_load_dwordx2 {v(V_T + 6, 2)}, {v(V_T + 5)}, {s(SRD_W, 4)}, {s(T)} offen")
    A(f"s_lshl_b32 {s(T)}, {s(S_TC)}, 5")
    A(f"buffer_load_dwordx2 {v(V_T + 8, 2)}, {v(V_T + 4)}, {s(SRD_W, 4)}, {s(T)} offen")
    for i in range(4):
        A(f"v_mov_b32 {v(V_O + i)}, -1")
    for r in range(2):
        for h in range(2):
            A(f"s_lshl_b32 {s(T + 1)}, {s(S_G)}, 10")
            A(f"s_add_u32 {s(T)}, {s(S_XP0)}, {r * XP_SLOT + h * 8192}")
            A(f"s_add_u32 {s(T + 1)}, {s(T + 1)}, {s(T)}")
            A(f"buffer_store_dwordx4 {v(V_O, 4)}, {v(V_L16)}, {WS}, {s(T + 1)} offen sc1")
            A(f"s_lshl_b32 {s(T + 1)}, {s(S_G)}, 9")
            A(f"s_add_u32 {s(T + 1)}, {s(T + 1)}, {s(T)}")
            A(f"buffer_store_dwordx2 {v(V_O, 2)}, {v(V_XS)}, {WS}, {s(T + 1)} offen sc1")
    for r in range(8):
        A(f"s_add_u32 {s(T)}, {s(S_OX0)}, {(r >> 1) * OXP_SLOT + (r & 1) * 8192}")
        for k in range(2):
            A(f"buffer_store_dwordx4 {v(V_O, 4)}, {v(V_OS)}, {WS}, {s(T)} offen offset:{k * 1024} sc1")
            A(f"buffer_store_dwordx2 {v(V_O, 2)}, {v(V_OS + 1)}, {WS}, {s(T)} offen offset:{k * 1024} sc1")
    A(f"s_add_u32 {s(T)}, {s(S_LOC0)}, {LOC_SLOT}")
    A(f"buffer_store_dwordx2 {v(V_O, 2)}, {v(V_MS)}, {WS}, {s(T)} offen sc1")
    A(f"buffer_store_dwordx2 {v(V_O, 2)}, {v(V_MS + 1)}, {WS}, {s(T)} offen sc1")
    A("s_waitcnt vmcnt(0)")
    A(f"v_and_b32 {v(V_T + 6)}, -2, {v(V_T + 6)}")
    A(f"v_and_b32 {v(V_T + 8)}, -2, {v(V_T + 8)}")
    A(f"buffer_store_dwordx2 {v(V_T + 6, 2)}, {v(V_MS)}, {WS}, {s(S_LOC0)} offen sc1")
    A(f"buffer_store_dwordx2 {v(V_T + 8, 2)}, {v(V_MS + 1)}, {WS}, {s(S_LOC0)} offen sc1")
    init_barrier_arrive(A, V_T)
    if cfg.mode != "chain":
        gen_r0(A, cfg, nwg, V_T, V_L16, V_ONE, V_VM)
    else:
        init_barrier_wait(A, V_T, nwg, cfg)
    near_half(A, cfg, T, 0, V_T)
    A(f"s_add_u32 {s(S_XP0)}, {s(S_XP0)}, {s(T)}")
    near_half(A, cfg, T, 1, V_T)
    near_half(A, cfg, T + 1, 2, V_T)
    A(f"s_cmp_eq_u32 {s(S_L)}, 0")
    A(f"s_cselect_b32 {s(T)}, {s(T)}, {s(T + 1)}")
    A(f"s_add_u32 {s(S_OX0)}, {s(S_OX0)}, {s(T)}")
    A(f"s_mov_b32 {s(S_S)}, 0")
    A(f"s_mov_b32 {s(S_PO)}, {OOR}")
    stamp_ = Stamp(A, cfg, S_S, V_ST, cfg.t0)
    stamp_.init()
    if cfg.timing == 3:
        A(f"s_mul_i32 s95, {s(S_L)}, {cfg.LAG}")
        stamp_.s_t = 95
    if cfg.timing:
        A("s_memrealtime s[0:1]")
        A("s_waitcnt lgkmcnt(0)")
        A("s_mov_b32 s92, s0")
        A("s_memtime s[4:5]")
        A("s_waitcnt lgkmcnt(0)")
    flag_spin(A, V_FO, V_FV, S_FVO, 8)
    modes = (("F", ""), ("S", " sc1")) if cfg.slow else (("F", cfg.LS),)
    for sx, _ in modes:
        if sx == "F" and cfg.slow:
            A(f"s_cmp_lg_u32 {s(S_MODE)}, 0")
            A("s_cbranch_scc1 OW_SEL_S")
        A.label("OW_SEL_" + sx)
        A(f"s_cmp_ge_u32 {s(S_WAVE)}, 2")
        A(f"s_cbranch_scc1 OW_{sx}2")
        A(f"s_branch OW_{sx}3")

    V_FW = 7
    SV = {0: dict(vm=0, pm=1, xst=2, barB=3, F=4, xend=5, vox=6), 1: dict(xst=0, pxok=1, barB=2, k1=3, k2=4, xok=5, F=6)}[cfg.sv]

    FN = [None]

    def stamp(name):
        if name in SV:
            stamp_(SV[name])
        if name != "vm":
            FN[0]()

    def body(nt, sx, LS):
        me = f"OW_{sx}{nt}"

        def vox_list(bs):
            L = []
            for q in range(4):
                for t in range(nt):
                    for e in range(2):
                        x = f"buffer_load_dwordx4 {a(bs * 96 + (t * 8 + q * 2 + e) * 4, 4)}, {v(V_TA + t)}, {WS}, {s(T + 5)} offen offset:{e * 1024} sc1"
                        if t == 0 and e == 0:
                            x = f"s_add_u32 {s(T + 5)}, {s(S_NV)}, {s(S_Q + q)}\n" + x
                        L.append(x)
            return L

        def addr():
            A(f"s_and_b32 {s(T)}, {s(S_S)}, 1")
            A(f"s_lshl_b32 {s(S_LOC)}, {s(T)}, 17")
            A(f"s_add_u32 {s(S_LOC)}, {s(S_LOC)}, {s(S_LOC0)}")
            A(f"s_xor_b32 {s(S_NLOC)}, {s(S_LOC)}, {LOC_SLOT}")
            A(f"s_bfe_u32 {s(S_TAG)}, {s(S_S)}, 0x10001")
            A(f"s_xor_b32 {s(S_NTAG)}, {s(S_TAG)}, {s(T)}")
            A(f"s_mul_i32 {s(S_XP)}, {s(T)}, {XP_SLOT}")
            A(f"s_add_u32 {s(S_XP)}, {s(S_XP)}, {s(S_XP0)}")
            A(f"s_and_b32 {s(T)}, {s(S_S)}, 3")
            A(f"s_mul_i32 {s(S_OX)}, {s(T)}, {OXP_SLOT}")
            A(f"s_add_u32 {s(S_OX)}, {s(S_OX)}, {s(S_OX0)}")
            A(f"s_bfe_u32 {s(S_OT)}, {s(S_S)}, 0x10002")
            A(f"s_add_u32 {s(S_S1)}, {s(S_S)}, 1")
            A(f"s_and_b32 {s(T)}, {s(S_S1)}, {cfg.vr - 1}")
            A(f"s_mul_i32 {s(S_NV)}, {s(T)}, {VOX_G}")
            A(f"s_add_u32 {s(S_NV)}, {s(S_NV)}, {s(S_VX0)}")
            A(f"s_add_u32 {s(T + 6)}, {s(S_LOC)}, {PM_O}")
            A(f"s_add_u32 {s(T + 7)}, {s(S_LOC)}, {PM_O + 4096}")
            A(f"s_add_u32 {s(T + 3)}, {s(S_LOC)}, {PX_O}")
            A(f"s_lshl_b32 {s(S_XA)}, {s(S_G)}, 10")
            A(f"s_add_u32 {s(S_XA)}, {s(S_XA)}, {s(S_XP)}")
            A(f"s_lshl_b32 {s(S_XA + 1)}, {s(S_G)}, 9")
            A(f"s_add_u32 {s(S_XA + 1)}, {s(S_XA + 1)}, {s(S_XP)}")
            for r in range(3):
                A(f"s_xor_b32 {s(S_XA + 2 + r)}, {s(S_XA)}, {(r + 1) << 10}")
                A(f"s_xor_b32 {s(S_XA + 5 + r)}, {s(S_XA + 1)}, {(r + 1) << 9}")

        A.label(me)
        A(f"s_mov_b32 {s(S_NV)}, {s(S_VX0)}")
        for x in vox_list(0):
            A(x)
        addr()
        step(nt, sx, LS, 0, vox_list, addr)
        step(nt, sx, LS, 1, vox_list, addr)

    def step(nt, sx, LS, bs, vox_list, addr):
        me = f"OW_{sx}{nt}"

        def vx(t, q, e):
            return a(bs * 96 + (t * 8 + q * 2 + e) * 4, 4)
        vq = vox_list(1 - bs)
        A.label(f"{me}L{bs}")
        FN[0] = Fine(A, cfg)
        FN[0]()
        lg = Cnt(A, "lgkmcnt", 15)
        vml = [f"buffer_load_dwordx4 {v(V_VM + 4 * k, 4)}, {v(V_TM + k // 4)}, {WS}, {s(S_LOC)} offen offset:{(k % 4) * 1024} sc1" for k in range(2 * nt)]
        pml = [f"buffer_load_dwordx4 {v(V_P, 4)}, {v(V_PR)}, {WS}, {s(T + 6)} offen sc1",
               f"buffer_load_dwordx4 {v(V_P + 16, 4)}, {v(V_L16)}, {WS}, {s(T + 7)} offen sc1"]
        pmr = [V_P, V_P + 2, V_P + 16, V_P + 18]
        for i in range(0, 4 * nt, 2):
            A(f"v_mov_b64 {v(V_E + i, 2)}, 0")
        vmr = [V_VM + 2 * k for k in range(4 * nt)]
        A("s_waitcnt vmcnt(0)")
        cnt_store(A, V_T, V_L16, S_S1, S_FN, LS)
        if cfg.vmd:
            light_poll(A, V_LP, S_LOC, 0, S_TAG, V_T, cfg.lsv)
            ppoll(A, vml + pml, vmr, S_TAG, V_T, depth=cfg.vmd)
            if cfg.vmd == 1:
                pk_ = A.newlabel("pk")
                tagcheck(A, pmr, V_T, S_TAG)
                A(f"s_cbranch_vccz {pk_}")
                for x in pml:
                    A(x)
        else:
            light_poll(A, V_LP, S_LOC, 0, S_TAG, V_T, cfg.lsv, every=True)
            for x in vml + pml:
                A(x)
            poll_tags(A, vml, vmr, S_TAG, V_T, issued=2)
        stamp("lp")
        stamp("vm")
        ppoll(A, pml, pmr, S_TAG, V_T, depth=max(cfg.pp, 2), primed=1, gap=cfg.pgap)
        if cfg.vmd == 1:
            A.label(pk_)
        stamp("pm")
        lg.issue(f"ds_write_b128 {v(V_PR)}, {v(V_P, 4)} offset:{L_PM}")
        pxl = [f"buffer_load_dwordx4 {v(V_PS + 4 * k, 4)}, {v(V_PX)}, {WS}, {s(T + 3)} offen offset:{k * 1024} sc1" for k in range(4)]
        pxl.append(f"buffer_load_dwordx4 {v(V_PS + 16, 4)}, {v(V_PW)}, {WS}, {s(T + 3)} offen sc1")
        n = 0
        for q in (0, 4, 1, 2, 3):
            if q in (1, 2, 3):
                lg.wait(("p", q))
            for t in range(nt):
                W = a(bs * 96 + (t * 8 + q * 2) * 4, 8) if q < 4 else v(V_VM + 8 * t, 8)
                A(f"{SMF} {v(V_E + 4 * t, 4)}, {v(V_P + 4 * q, 4)}, {W}, {v(V_IDX)}")
                n += 1
                if n == 2:
                    lg.drain()
                    A("s_barrier")
                    stamp("barA")
                    for qq in (1, 2, 3):
                        lg.issue(f"ds_read_b128 {v(V_P + 4 * qq, 4)}, {v(V_PR + qq)} offset:{L_PM}", ("p", qq))
        stamp("mf")
        X, Y = V_E + 12, V_E + 16
        for k in range(4):
            A(f"v_add_f32 {v(X + k)}, {v(V_E + 2 * k)}, {v(V_E + 2 * k + 1)}")
        A(f"v_and_or_b32 {v(X)}, {v(X)}, -2, {s(S_TAG)}")
        A(f"buffer_store_dwordx4 {v(X, 4)}, {v(V_L16)}, {WS}, {s(S_XA)} offen sc1")
        if nt == 3:
            for k in range(2):
                A(f"v_add_f32 {v(Y + k)}, {v(V_E + 8 + 2 * k)}, {v(V_E + 9 + 2 * k)}")
            A(f"v_and_or_b32 {v(Y)}, {v(Y)}, -2, {s(S_TAG)}")
            A(f"buffer_store_dwordx2 {v(Y, 2)}, {v(V_XS)}, {WS}, {s(S_XA + 1)} offen sc1")
        stamp("xst")

        def oxp():
            for tt in range(2):
                A(f"buffer_store_dwordx4 {v(V_O + 4 * tt, 4)}, {v(V_OS)}, {WS}, {s(S_PO)} offen offset:{tt * 1024} sc1")
            for tt in range(2 if nt == 3 else 0):
                A(f"buffer_store_dwordx2 {v(V_O + 8 + 2 * tt, 2)}, {v(V_OS + 1)}, {WS}, {s(S_PO)} offen offset:{tt * 1024} sc1")
        if cfg.oxd:
            if nt == 2 and cfg.oxs:
                A(f"s_sleep {cfg.oxs}")
            oxp()
        smp = f"buffer_load_dword {v(V_FV)}, {v(V_FO)}, {WS}, {s(S_FVO)} offen sc1"

        def px_stage(issued):
            poll_tags(A, pxl, [V_PS, V_PS + 4, V_PS + 8, V_PS + 12, V_PS + 16, V_PS + 18], S_TAG, V_T, issued=issued)
            stamp("pxok")
            for k in range(4):
                lg.issue(f"ds_write_b128 {v(V_PX)}, {v(V_PS + 4 * k, 4)} offset:{L_PX + k * 1024}")
            lg.issue(f"ds_write_b128 {v(V_PW)}, {v(V_PS + 16, 4)} offset:{L_PX}")
        xl = [f"buffer_load_dwordx4 {v(V_C + 4 * r, 4)}, {v(V_L16)}, {WS}, {s(S_XA + 2 + r)} offen sc1" for r in range(3)]
        if nt == 3:
            xl += [f"buffer_load_dwordx2 {v(V_C + 12 + 4 * r, 2)}, {v(V_XS)}, {WS}, {s(S_XA + 5 + r)} offen sc1" for r in range(3)]

        def finish():
            stamp("k2")
            xr = [V_C + 4 * k for k in range(len(xl))]
            xo = A.newlabel("xo")
            ex = 5 if cfg.pxe else 0
            for d in range(cfg.xb - 1, 0, -1):
                A(f"s_waitcnt vmcnt({d * len(xl) + ex})")
                tagcheck(A, xr, V_T, S_TAG)
                A(f"s_cbranch_vccz {xo}")
            if cfg.px > 1:
                for x in xl:
                    A(x)
                A(f"s_waitcnt vmcnt({len(xl) + ex})")
                tagcheck(A, xr, V_T, S_TAG)
                A(f"s_cbranch_vccz {xo}")
                ppoll(A, xl, xr, S_TAG, V_T, depth=2, primed=1)
            else:
                poll_tags(A, xl, xr, S_TAG, V_T, issued=ex)
            A.label(xo)
            stamp("xok")
            prs = [(X, V_C), (X + 2, V_C + 2), (Y, V_C + 12)][:nt]
            D = V_E
            A("s_mov_b32 vcc_lo, 0x55555555")
            A("s_mov_b32 vcc_hi, vcc_lo")
            for k, (own, c) in enumerate(prs):
                A(f"v_pk_add_f32 {v(own, 2)}, {v(own, 2)}, {v(c, 2)}")
                A(f"v_pk_add_f32 {v(D + 2 * k, 2)}, {v(c + 4, 2)}, {v(c + 8, 2)}")
            for k, (own, c) in enumerate(prs):
                A(f"v_pk_add_f32 {v(own, 2)}, {v(own, 2)}, {v(D + 2 * k, 2)}")
            q1, q2 = "quad_perm:[1,0,3,2] row_mask:0xf bank_mask:0xf", "quad_perm:[2,3,0,1] row_mask:0xf bank_mask:0xf"
            for k, (own, c) in enumerate(prs):
                A(f"v_cndmask_b32_dpp {v(D + 2 * k)}, {v(own + 1)}, {v(own)}, vcc {q1}")
            A("s_not_b64 vcc, vcc")
            for k, (own, c) in enumerate(prs):
                A(f"v_cndmask_b32_dpp {v(D + 2 * k + 1)}, {v(own)}, {v(own + 1)}, vcc {q1}")
            A(f"s_mov_b64 vcc, {s(S_LO, 2)}")
            for k in range(nt):
                A(f"v_cvt_pk_bf16_f32 {v(D + 6 + 2 * k)}, {v(D + 2 * k)}, {v(D + 2 * k + 1)}")
            A(f"v_cndmask_b32_dpp {v(D)}, {v(D + 8)}, {v(D + 6)}, vcc {q2}")
            A("s_not_b64 vcc, vcc")
            A(f"v_cndmask_b32_dpp {v(D + 1)}, {v(D + 6)}, {v(D + 8)}, vcc {q2}")
            A(f"v_and_or_b32 {v(D)}, {v(D)}, -2, {s(S_NTAG)}")
            A(f"buffer_store_dwordx2 {v(D, 2)}, {v(V_MS)}, {WS}, {s(S_NLOC)} offen{LS}")
            if nt == 3:
                A(f"v_mov_b32_dpp {v(D + 11)}, {v(D + 10)} {q2}")
                A(f"v_and_or_b32 {v(D + 10)}, {v(D + 10)}, -2, {s(S_NTAG)}")
                A(f"s_mov_b64 exec, {s(S_LO, 2)}")
                A(f"buffer_store_dwordx2 {v(D + 10, 2)}, {v(V_MS + 1)}, {WS}, {s(S_NLOC)} offen{LS}")
                A("s_mov_b64 exec, -1")
            stamp("F")
            gv, g2 = A.newlabel("gv"), A.newlabel("gv")
            A(f"s_min_u32 {s(T)}, {s(S_S1)}, 63")
            A.label(g2)
            A(f"v_cmp_ge_i32 vcc, {s(T)}, {v(V_FV)}")
            A(f"s_cbranch_vccz {gv}")
            A(smp)
            A("s_waitcnt vmcnt(0)")
            spin_back(A, g2, 1)
            A.label(gv)
        assert cfg.xafter
        if cfg.xsl:
            A(f"s_sleep {cfg.xsl + (cfg.xs2 if nt == 2 else 0)}")
        stamp("k1")
        A(smp)
        for d in range(cfg.xb):
            if d:
                A(f"s_sleep {cfg.xgap}")
            for x in xl:
                A(x)
        if cfg.pxe:
            if cfg.pxd:
                A(f"s_sleep {cfg.pxd}")
            for x in pxl:
                A(x)
            finish()
            px_stage(nt - 1)
        else:
            finish()
            if cfg.owb:
                A("s_barrier")
            for x in pxl + vq[:cfg.vpre * nt]:
                A(x)
            px_stage(cfg.vpre * nt)
            vq = vq[cfg.vpre * nt:]
        lg.drain()
        A("s_barrier")
        stamp("barB")
        fr = [(q, e, tt) for q in range(5) for e in range(2) for tt in range(2)]

        def rd(i):
            q, e, tt = fr[i]
            va, off = (V_PX + q, (e * 2 + tt) * 1024) if q < 4 else (V_L16, 16384 + (e * 2 + tt) * 1024)
            lg.issue(f"ds_read_b128 {v(V_B + 4 * (i % 6), 4)}, {v(va)} offset:{L_PX + off}", ("b", i))
        for i in range(5):
            rd(i)
        k1, k2 = cfg.xk1, cfg.xk2
        n = 0
        xq = []
        done2 = bool(cfg.xafter)
        if cfg.xafter:
            k1 = k2 = -1
        for i, (q, e, tt) in enumerate(fr):
            lg.wait(("b", i))
            for t in range(nt):
                ac = v(V_Y + 8 * t + 4 * tt, 4)
                W = vx(t, q, e) if q < 4 else v(V_VM + 8 * t + 4 * e, 4)
                A(f"{MF16} {ac}, {W}, {v(V_B + 4 * (i % 6), 4)}, {'0' if i < 2 else ac}")
                n += 1
                if t == 0 and i + 5 < 20:
                    rd(i + 5)
                if n == k1:
                    stamp("k1")
                    xq = list(xl)
                if xq:
                    A(xq.pop(0))
                if done2 and vq and n % cfg.vsp == 0:
                    A(vq.pop(0))
                if n == k2:
                    assert not xq
                    finish()
                    done2 = True
        if not done2:
            finish()
        stamp("xend")
        for tt in range(2):
            o = V_O + 4 * tt
            for t in range(2):
                for h in range(2):
                    y = V_Y + 8 * t + 4 * tt + 2 * h
                    A(f"v_cvt_pk_bf16_f32 {v(o + 2 * t + h)}, {v(y)}, {v(y + 1)}")
                A(f"v_and_or_b32 {v(o + 2 * t)}, {v(o + 2 * t)}, -2, {s(S_OT)}")
        if nt == 3:
            for tt in range(2):
                o = V_O + 8 + 2 * tt
                for h in range(2):
                    y = V_Y + 16 + 4 * tt + 2 * h
                    A(f"v_cvt_pk_bf16_f32 {v(o + h)}, {v(y)}, {v(y + 1)}")
                A(f"v_and_or_b32 {v(o)}, {v(o)}, -2, {s(S_OT)}")
        A(f"s_mov_b32 {s(S_PO)}, {s(S_OX)}")
        if cfg.oxd:
            nl = A.newlabel("nl")
            A(f"s_sub_u32 {s(T)}, {s(S_S)}, {cfg.oxd - 1}")
            A(f"s_cmp_lt_u32 {s(T)}, {64 - cfg.oxd}")
            A(f"s_cbranch_scc1 {nl}")
            oxp()
            A(f"s_mov_b32 {s(S_PO)}, {OOR}")
            A.label(nl)
        else:
            oxp()
        A(f"s_cmp_eq_u32 {s(S_S)}, 63")
        A("s_cbranch_scc1 OW_END")
        for x in vq:
            if not cfg.dbg & 8:
                A(x)
        stamp("vox")
        FN[0].dump(S_S, cfg.t0 // 2, V_T)
        A(f"s_add_u32 {s(S_S)}, {s(S_S)}, 1")
        addr()
        if cfg.timing == 3:
            A("s_add_u32 s95, s95, 1")
        if bs == 1:
            A(f"s_branch {me}L0")
    for sx, LS in modes:
        for nt in (3, 2):
            body(nt, sx, LS)
    A.label("OW_END")
    stamp_.dump(V_T)
    if cfg.timing:
        A("s_memrealtime s[98:99]")
        A("s_memtime s[6:7]")
        A("s_waitcnt lgkmcnt(0)")
        A("s_sub_u32 s6, s6, s4")
        A(f"s_cmp_ge_u32 {s(S_ROLE)}, 2")
        A("s_cbranch_scc1 EXIT")
        A(f"v_mov_b32 {v(V_T)}, s92")
        A(f"v_mov_b32 {v(V_T + 1)}, s98")
        A(f"s_lshl_b32 {s(T)}, {s(S_ROLE)}, 3")
        A(f"v_mov_b32 {v(V_T + 2)}, {s(T)}")
        A("s_mov_b64 exec, 1")
        A(f"buffer_store_dwordx2 {v(V_T, 2)}, {v(V_T + 2)}, {s(SRD_DBG, 4)}, 0 offen offset:16")
        A(f"v_mov_b32 {v(V_T)}, s6")
        A(f"buffer_store_dword {v(V_T)}, {v(V_T + 2)}, {s(SRD_DBG, 4)}, 0 offen offset:64")
    A("s_endpgm")


def gen_r0(A, cfg, nwg, V_T, V_L16, V_ONE, V_A):
    V_XR, V_SA = V_A, V_A + 1
    V_R = V_A + 4
    V_U = V_R + 80
    A(f"s_and_b32 {s(T)}, {s(S_WAVE)}, 1")
    A(f"s_lshr_b32 {s(T + 1)}, {s(S_WAVE)}, 1")
    A(f"v_and_b32 {v(V_T)}, 15, v0")
    A(f"v_mul_u32_u24 {v(V_XR)}, 1280, {v(V_T)}")
    A(f"v_lshrrev_b32 {v(V_T + 1)}, 4, v0")
    A(f"v_lshl_add_u32 {v(V_XR)}, {v(V_T + 1)}, 3, {v(V_XR)}")
    A(f"s_mul_i32 {s(T + 2)}, {s(T)}, {16 * 1280}")
    A(f"s_mul_i32 {s(T + 3)}, {s(T + 1)}, 640")
    A(f"s_add_u32 {s(T + 2)}, {s(T + 2)}, {s(T + 3)}")
    A(f"v_add_u32 {v(V_XR)}, {s(T + 2)}, {v(V_XR)}")
    A(f"v_lshlrev_b32 {v(V_SA)}, 8, {v(V_T + 1)}")
    A(f"v_lshl_add_u32 {v(V_SA)}, {v(V_T)}, 3, {v(V_SA)}")
    A(f"s_mul_i32 {s(T + 2)}, {s(T + 1)}, 2560")
    A(f"s_lshl_b32 {s(T + 3)}, {s(T)}, 7")
    A(f"s_add_u32 {s(T + 2)}, {s(T + 2)}, {s(T + 3)}")
    A(f"s_add_u32 {s(T + 2)}, {s(T + 2)}, 40960")
    A(f"v_add_u32 {v(V_SA)}, {s(T + 2)}, {v(V_SA)}")
    A(f"s_mul_i32 {s(T + 5)}, {s(T + 1)}, 20480")
    A(f"s_lshl_b32 {s(T + 3)}, {s(T)}, 10")
    A(f"s_add_u32 {s(T + 5)}, {s(T + 5)}, {s(T + 3)}")
    make_srd(A, SRD_W, P_X, 2048 * 1280)
    for k in range(2):
        A(f"s_add_u32 {s(T + 2)}, {s(S_ROLE)}, {32 * k}")
        A(f"s_mul_i32 {s(T + 2)}, {s(T + 2)}, {32 * 1280}")
        for j in range(10):
            for h in range(2):
                A(f"buffer_load_dwordx2 {v(V_R + 40 * k + 4 * j + 2 * h, 2)}, {v(V_XR)}, {s(SRD_W, 4)}, {s(T + 2)} offen offset:{j * 64 + h * 32}")
    for k in range(2):
        A(f"s_add_u32 {s(T + 2)}, {s(S_ROLE)}, {32 * k}")
        A(f"s_mul_i32 {s(T + 4)}, {s(T + 2)}, {XSEGS}")
        A(f"s_add_u32 {s(T + 4)}, {s(T + 4)}, {XIN}")
        A(f"s_add_u32 {s(T + 3)}, {s(T + 4)}, {s(T + 5)}")
        A(f"s_waitcnt vmcnt({20 if k == 0 else 13})")
        for j in range(10):
            A(f"buffer_store_dwordx4 {v(V_R + 40 * k + 4 * j, 4)}, {v(V_L16)}, {WS}, {s(T + 3)} offen offset:{(j & 1) * 2048} sc1")
            if j & 1:
                A(f"s_add_u32 {s(T + 3)}, {s(T + 3)}, 4096")
        A(f"v_mov_b64 {v(V_T, 2)}, 0")
        for i in range(40):
            r = V_R + 40 * k + i
            A(f"v_lshlrev_b32 {v(V_U)}, 16, {v(r)}")
            A(f"v_and_b32 {v(V_U + 1)}, 0xffff0000, {v(r)}")
            A(f"v_add_f32 {v(V_T)}, {v(V_T)}, {v(V_U)}")
            A(f"v_fmac_f32 {v(V_T + 1)}, {v(V_U)}, {v(V_U)}")
            A(f"v_add_f32 {v(V_T)}, {v(V_T)}, {v(V_U + 1)}")
            A(f"v_fmac_f32 {v(V_T + 1)}, {v(V_U + 1)}, {v(V_U + 1)}")
        A(f"v_mov_b64 {v(V_T + 2, 2)}, 0")
        A(f"buffer_store_dwordx2 {v(V_T, 2)}, {v(V_SA)}, {WS}, {s(T + 4)} offen sc1")
        A(f"buffer_store_dwordx2 {v(V_T + 2, 2)}, {v(V_SA)}, {WS}, {s(T + 4)} offen offset:1024 sc1")
        A(f"buffer_store_dwordx2 {v(V_T + 2, 2)}, {v(V_SA)}, {WS}, {s(T + 4)} offen offset:1536 sc1")
    init_barrier_wait(A, V_T + 4, nwg, cfg)
    A(f"s_lshl_b32 {s(T)}, {s(S_ROLE)}, 9")
    A(f"s_lshl_b32 {s(T + 1)}, {s(S_WAVE)}, 2")
    A(f"s_add_u32 {s(T)}, {s(T)}, {s(T + 1)}")
    A(f"s_add_u32 {s(T)}, {s(T)}, {flag_row(F_XIN)}")
    flag_store(A, V_ONE, V_L16, T)
    A(f"s_add_u32 {s(T)}, {s(T)}, {32 * 512}")
    flag_store(A, V_ONE, V_L16, T)
```

```python
import sys
import struct
import math
from asmlib import Asm, v, a, s

NAME = "interleave_layers__memory_aug_recurrent_mem_tr__mixer_s_mlp__prompt"

WS_BYTES = 268435456
FLAGS = 0
DIAG = 0x100000
LOC = 0x200000
LOC_X, LOC_SLOT = 0x80000, 0x20000
MEM_O, PM_O, PX_O, VM_O = 0, 10240, 16384, 40960
XP = 0x400000
XP_SLOT = 16 * 16384
OXP = 0x600000
OXP_L = 0x200000
OXP_SRC = 2 * 40960
OXP_SLOT = 4 * OXP_SRC
PROBE = 0x180000
XSEG = 40960
XSEGS = 46080
XIN = 0xA00000
XM = XIN + 128 * XSEGS
X1B = XM + 128 * XSEGS
HB = X1B + 8 * XSEGS
GB = HB + 8 * XSEG
GSEG = 98304
VOX = (GB + 8 * GSEG + 0xfffff) & ~0xfffff
VOX_G = 40 * 8192
DUMMY = VOX + 32 * VOX_G
QK = DUMMY + 0x100000
QK_H = 36864
QK_SEG = 32 * QK_H
WS_END = QK + 64 * QK_SEG
LSTRIDE = 64 * QK_SEG
assert 4 * OXP_SLOT <= PROBE and WS_END + LSTRIDE <= WS_BYTES, WS_END

OOR = 0x20000000
F_XIN, F_QK, F_V, F_VO, F_XM, F_H, F_X1, F_G = range(8)
C_H, C_X1, C_G, C_W4 = 0, 20, 40, 88
TS = 0x80000


def flag_row(kind, layer=0, seg=0):
    return FLAGS + ((kind * 2 + layer) * 64 + seg) * 512


def f32(x):
    return "0x%08x" % struct.unpack("<I", struct.pack("<f", x))[0]


P_X, P_MEM0, P_WQ, P_WK, P_WV, P_WO, P_SEG, P_BX, P_W1, P_W2, P_W3, P_W4, P_OUT, P_DBG, P_WS = [16 + 2 * i for i in range(15)]
SRD_W, SRD_WS, SRD_DBG = 4, 8, 12
WS = s(SRD_WS, 4)
S_ROLEG = 3
S_WAVE, S_SPIN, S_ROLE, S_MODE = 46, 47, 48, 49
S_GID = 101
SPIN_BUDGET = 200000
MF16 = "v_mfma_f32_16x16x32_bf16"
SMF = "v_smfmac_f32_16x16x64_bf16"


class Cfg:
    def __init__(self, **kw):
        self.LAG = 9
        self.first = 0
        self.mode = "full"
        self.lstride = 0
        self.wsbytes = WS_BYTES
        self.timing = 0
        self.t0 = 30
        self.force_fallback = 0
        self.spin = SPIN_BUDGET
        self.off = 0
        self.near = 1
        self.lsl = 1
        self.xk1 = 12
        self.xk2 = 36
        self.ring = 0
        self.cq5 = 1
        self.oxd = 0
        self.oxs = 2
        self.pob = 0
        self.spec = 1
        self.npre = 4
        self.xs2 = 0
        self.vmd = 1
        self.pxd = 4
        self.cvcap = 5
        self.bx = 7
        self.nown = 12
        self.se = 3
        self.cqcap = 4
        self.lsv = 0
        self.xb = 1
        self.vpre = 2
        self.vr = 2
        self.wlate = 1
        self.wd = 0
        self.wsl = 2
        self.wf = 9
        self.wdp = 54
        self.wdp1 = 58
        self.ws = 21
        self.ws1 = 31
        self.wg = 4
        self.w4d = 130
        self.w4s = 24
        self.wpk = 1
        self.w4g = 3
        self.p1late = 1
        self.p1sl = 4
        self.p1f = 56
        self.p1d = 140
        self.p1s = 60
        self.p1g = 5
        self.pofl = 0
        self.pxe = 1
        self.poc = 3
        self.pop = 0
        self.poa = 0
        self.pod = 0
        self.posl = 4
        self.pom = 72
        self.pon = 92
        self.pog = 2
        self.pos = 26
        self.xafter = 1
        self.xsl = 6
        self.xgap = 2
        self.vb1 = 0
        self.vbl = 1
        self.vsp = 2
        self.pxk = 6
        self.pxs = 3
        self.owb = 1
        self.pg = 2
        self.pp = 2
        self.px = 1
        self.pgap = 12
        self.kb = 3
        self.sv = 0
        self.dbg = 0
        self.dsp = 4
        self.ool = 1
        self.slow = 0
        self.__dict__.update(kw)
        self.LS = " LOCAL" if self.ool and not self.slow else ""


CFG = [None]


def make_srd(A, d, ptr, nbytes):
    A(f"s_mov_b32 {s(d)}, {s(ptr)}")
    A(f"s_mov_b32 {s(d + 1)}, {s(ptr + 1)}")
    A(f"s_mov_b32 {s(d + 2)}, {nbytes}")
    A(f"s_mov_b32 {s(d + 3)}, 0x20000")


def spin_back(A, top, sleep=0):
    if sleep:
        A(f"s_sleep {sleep}")
    A(f"s_sub_u32 {s(S_SPIN)}, {s(S_SPIN)}, 1")
    A(f"s_cbranch_scc0 {top}")
    A("s_branch ABORT")


class Cnt:
    def __init__(self, A, name, cap):
        self.A, self.name, self.cap = A, name, cap
        self.q = []
        self.done = []

    def issue(self, text, tag=None):
        if len(self.q) >= self.cap:
            keep = self.cap - 4
            self.A(f"s_waitcnt {self.name}({keep})")
            self.q = self.q[len(self.q) - keep:]
        self.done.append(tag)
        self.A(text)
        self.q.append(tag)

    def wait(self, tag):
        if tag not in self.q:
            return
        i = len(self.q) - 1 - self.q[::-1].index(tag)
        n = len(self.q) - 1 - i
        self.A(f"s_waitcnt {self.name}({n})")
        self.q = self.q[i + 1:]

    def drain(self):
        if self.q:
            self.A(f"s_waitcnt {self.name}(0)")
        self.q = []


def item_list(i_reg, rl, rs, A0, first, t, N=64):
    return [f"s_sub_i32 {s(t)}, {s(i_reg)}, {A0}",
            f"s_sub_i32 {s(rl)}, {s(i_reg)}, {A0 - 1}",
            f"s_ashr_i32 {s(t)}, {s(t)}, 1",
            f"s_ashr_i32 {s(rl)}, {s(rl)}, 1",
            f"s_sub_i32 {s(t + 1)}, {s(i_reg)}, {N}",
            f"s_max_i32 {s(t)}, {s(t)}, {s(t + 1)}",
            f"s_add_i32 {s(t + 1)}, {s(t + 1)}, 1",
            f"s_max_i32 {s(rl)}, {s(rl)}, {s(t + 1)}",
            f"s_max_i32 {s(t)}, {s(t)}, 0",
            f"s_max_i32 {s(rl)}, {s(rl)}, 0",
            f"s_sub_i32 {s(rl)}, {s(rl)}, {s(t)}",
            f"s_sub_i32 {s(rs)}, {s(i_reg)}, {s(t)}",
            f"s_sub_i32 {s(t)}, {s(t)}, {s(rs)}",
            f"s_mul_i32 {s(t)}, {s(t)}, {s(rl)}",
            f"s_add_i32 {s(rs)}, {s(rs)}, {s(t)}"]


def init_barrier_arrive(A, vt):
    A("s_waitcnt vmcnt(0)")
    A("s_barrier")
    lab = A.newlabel("arr")
    A(f"s_cmp_lg_u32 {s(S_WAVE)}, 0")
    A(f"s_cbranch_scc1 {lab}")
    A(f"v_mov_b32 {v(vt)}, 1")
    A(f"s_lshl_b32 {s(S_ROLEG)}, {s(S_MODE)}, 2")
    A(f"v_mov_b32 {v(vt + 1)}, {s(S_ROLEG)}")
    A("s_mov_b64 exec, 1")
    A(f"buffer_atomic_add {v(vt)}, {v(vt + 1)}, {s(SRD_DBG, 4)}, 0 offen sc1")
    A("s_mov_b64 exec, -1")
    A.label(lab)


def init_barrier_wait(A, vt, nwg, cfg):
    top, ok1 = A.newlabel("ibw"), A.newlabel("ibw")
    A(f"s_lshl_b32 {s(S_ROLEG)}, {s(S_MODE)}, 2")
    A(f"v_mov_b32 {v(vt + 1)}, {s(S_ROLEG)}")
    A.label(top)
    A(f"buffer_load_dword {v(vt)}, {v(vt + 1)}, {s(SRD_DBG, 4)}, 0 offen sc1")
    A("s_waitcnt vmcnt(0)")
    A(f"v_cmp_ne_u32 vcc, {nwg}, {v(vt)}")
    A(f"s_cbranch_vccz {ok1}")
    spin_back(A, top, 8)
    A.label(ok1)
    ok = A.newlabel("ibok")
    A(f"s_cmp_lg_u32 {s(S_MODE)}, 0")
    A(f"s_cbranch_scc1 {ok}")
    A(f"v_and_b32 {v(vt + 1)}, 7, v0")
    A(f"v_lshlrev_b32 {v(vt + 1)}, 2, {v(vt + 1)}")
    A(f"buffer_load_dword {v(vt)}, {v(vt + 1)}, {s(SRD_DBG, 4)}, 0 offen offset:32 sc1")
    A("s_waitcnt vmcnt(0)")
    A(f"v_cmp_ne_u32 vcc, {1000 if cfg.force_fallback else 32}, {v(vt)}")
    A(f"s_cbranch_vccz {ok}")
    A("s_barrier")
    A(f"s_mov_b32 {s(S_MODE)}, 1")
    A(f"s_mov_b32 {s(S_ROLEG)}, s2")
    A("s_branch DISPATCH")
    A.label(ok)


def near_half(A, cfg, dst, page, vt):
    if not cfg.near:
        A(f"s_mov_b32 {s(dst)}, 0")
        return
    A(f"v_mov_b32 {v(vt + 1)}, {192 + 4 * page}")
    A(f"buffer_load_dword {v(vt)}, {v(vt + 1)}, {s(SRD_DBG, 4)}, 0 offen sc1")
    A("s_waitcnt vmcnt(0)")
    A(f"v_readfirstlane_b32 {s(dst)}, {v(vt)}")
    A(f"s_cmp_gt_i32 {s(dst)}, 0")
    A(f"s_cselect_b32 {s(dst)}, 0x2000, 0")
    if cfg.near == 2:
        A(f"s_xor_b32 {s(dst)}, {s(dst)}, 0x2000")


def tagcheck(A, regs, dst, tag):
    regs = list(regs)
    outs = []
    k = 0
    while len(regs) >= 2:
        A(f"v_bitop3_b32 {v(dst + k)}, {v(regs[0])}, {v(regs[1])}, {s(tag)} bitop3:0x7e")
        outs.append(dst + k)
        regs = regs[2:]
        k += 1
        if len(outs) == 3:
            A(f"v_or3_b32 {v(outs[0])}, {v(outs[0])}, {v(outs[1])}, {v(outs[2])}")
            outs = [outs[0]]
            k = 1
    if regs:
        if outs:
            A(f"v_bitop3_b32 {v(outs[-1])}, {v(regs[0])}, {v(outs[-1])}, {s(tag)} bitop3:0xde")
        else:
            A(f"v_xor_b32 {v(dst)}, {s(tag)}, {v(regs[0])}")
            outs = [dst]
    if len(outs) == 2:
        A(f"v_bitop3_b32 {v(dst)}, {v(outs[0])}, {v(outs[1])}, 1 bitop3:0xa8")
    else:
        A(f"v_and_b32 {v(dst)}, 1, {v(dst)}")
    A(f"v_cmp_ne_u32 vcc, 0, {v(dst)}")


def poll_tags(A, loads, regs, tag, tmp, issued=None, rsleep=0, light=None, entry=None, first_done=None, pre=False):
    top, ok, ok1 = A.newlabel("pt"), A.newlabel("po"), A.newlabel("pf")
    if issued is None and (light or first_done):
        for x in loads:
            A(x)
        issued = 0
    if pre:
        A.nf(f"s_cbranch_vccz {ok}")
    elif issued is not None:
        if issued < 63:
            A(f"s_waitcnt vmcnt({issued})")
        tagcheck(A, regs, tmp, tag)
        A(f"s_cbranch_vccz {ok1 if first_done else ok}")
        if first_done:
            first_done()
        if light:
            light()
    if entry:
        A.label(entry)
    A.label(top)
    for x in loads:
        A(x)
    A("s_waitcnt vmcnt(0)")
    tagcheck(A, regs, tmp, tag)
    A(f"s_cbranch_vccz {ok}")
    spin_back(A, top, rsleep)
    if first_done:
        A.label(ok1)
        first_done()
    A.label_nf(ok) if pre else A.label(ok)


def light_poll(A, vaddr, soff, off, tag, tmp, sleep, every=False):
    top, ok = A.newlabel("lp"), A.newlabel("lo")
    A.label(top)
    A(f"buffer_load_dword {v(tmp)}, {v(vaddr)}, {WS}, {s(soff)} offen offset:{off} sc1")
    A("s_waitcnt vmcnt(0)")
    A(f"v_and_b32 {v(tmp)}, 1, {v(tmp)}")
    if every:
        A(f"v_cmp_ne_u32 vcc, {s(tag)}, {v(tmp)}")
        A(f"s_cbranch_vccz {ok}")
    else:
        A(f"v_cmp_eq_u32 vcc, {s(tag)}, {v(tmp)}")
        A(f"s_cbranch_vccnz {ok}")
    spin_back(A, top, sleep)
    A.label(ok)


def ppoll(A, loads, regs, tag, tmp, depth=2, primed=0, gap=0, light=None, issued=None):
    n = len(loads)
    top, ok = A.newlabel("pp"), A.newlabel("po")
    if light:
        if issued is None:
            for x in loads:
                A(x)
        A(f"s_waitcnt vmcnt({issued or 0})")
        tagcheck(A, regs, tmp, tag)
        A(f"s_cbranch_vccz {ok}")
        go = A.newlabel("pg")
        for k in range(0, len(regs), 2):
            A(f"v_bitop3_b32 {v(tmp + (1 if k else 0))}, {v(regs[k])}, {v(regs[k + 1])}, {s(tag)} bitop3:0x42")
            if k:
                A(f"v_and_b32 {v(tmp)}, {v(tmp)}, {v(tmp + 1)}")
        A(f"v_and_b32 {v(tmp)}, 1, {v(tmp)}")
        A(f"v_cmp_eq_u32 vcc, 0, {v(tmp)}")
        A(f"s_cbranch_vccnz {go}")
        light()
        A.label(go)
    for d in range(depth - 1 - primed):
        for x in loads:
            A(x)
        if gap:
            A(f"s_nop {gap - 1}\n" * 2)
    A.label(top)
    for x in loads:
        A(x)
    A(f"s_waitcnt vmcnt({n * (depth - 1)})")
    tagcheck(A, regs, tmp, tag)
    A(f"s_cbranch_vccz {ok}")
    spin_back(A, top)
    A.label(ok)


def flag_spin(A, vo, vv, soff, sleep, wide=False):
    top, ok = A.newlabel("fl"), A.newlabel("fo")
    A.label(top)
    if wide:
        A(f"buffer_load_dwordx2 {v(vv, 2)}, {v(vo)}, {WS}, {s(soff)} offen sc1")
        A("s_waitcnt vmcnt(0)")
        A(f"v_min_u32 {v(vv)}, {v(vv)}, {v(vv + 1)}")
    else:
        A(f"buffer_load_dword {v(vv)}, {v(vo)}, {WS}, {s(soff)} offen sc1")
        A("s_waitcnt vmcnt(0)")
    A(f"v_cmp_eq_u32 vcc, 0, {v(vv)}")
    A(f"s_cbranch_vccz {ok}")
    spin_back(A, top, sleep)
    A.label(ok)


def flag_store(A, vone, vzero, soff, LS=" sc1", mask=None):
    if CFG[0].timing == 4:
        A("s_memrealtime s[98:99]")
        A("s_waitcnt lgkmcnt(0)")
        A("s_or_b32 s98, s98, 1")
        A(f"v_mov_b32 {v(vone)}, s98")
    A("s_mov_b64 exec, 1" if mask is None else f"s_and_b64 exec, {s(mask, 2)}, 1")
    A(f"buffer_store_dword {v(vone)}, {v(vzero)}, {WS}, {s(soff)} offen{LS}")
    A("s_mov_b64 exec, -1")


def cnt_store(A, vtmp, vzero, sval, soff, LS="", mask=None, ts=None):
    A(f"v_mov_b32 {v(vtmp)}, {s(sval)}")
    A("s_mov_b64 exec, 1" if mask is None else f"s_and_b64 exec, {s(mask, 2)}, 1")
    A(f"buffer_store_dword {v(vtmp)}, {v(vzero)}, {WS}, {s(soff)} offen{LS}")
    if CFG[0].timing == 4 and ts is not None:
        A("s_memrealtime s[98:99]")
        A(f"s_add_u32 s97, {s(ts)}, {TS}")
        A("s_waitcnt lgkmcnt(0)")
        A(f"v_mov_b32 {v(vtmp)}, s98")
        A(f"buffer_store_dword {v(vtmp)}, {v(vzero)}, {WS}, s97 offen")
    A("s_mov_b64 exec, -1")


def rnd2(A, pk, x0, x1):
    A(f"v_cvt_pk_bf16_f32 {v(pk)}, {v(x0)}, {v(x1)}")
    A(f"v_lshlrev_b32 {v(x0)}, 16, {v(pk)}")
    A(f"v_and_b32 {v(x1)}, 0xffff0000, {v(pk)}")


def rnd1(A, x, tmp):
    A(f"v_cvt_pk_bf16_f32 {v(tmp)}, {v(x)}, {v(x)}")
    A(f"v_lshlrev_b32 {v(x)}, 16, {v(tmp)}")


class Stamp:
    def __init__(self, A, cfg, s_t, vreg, t0):
        self.A, self.on, self.s_t, self.vr, self.t0 = A, cfg.timing == 3, s_t, vreg, t0

    def init(self):
        if self.on:
            self.A(f"v_mov_b32 {v(self.vr)}, 0")

    def __call__(self, k):
        if not self.on:
            return
        A = self.A
        A("s_memrealtime s[96:97]")
        if k == 0:
            A("s_memtime s[14:15]" if False else "s_memtime s[0:1]")
        A(f"s_sub_u32 s98, {s(self.s_t)}, {self.t0}")
        A("s_lshl_b32 s99, s98, 3")
        A(f"s_add_u32 s99, s99, {k}")
        A("s_cmp_lt_u32 s98, 7")
        A("s_cselect_b32 s99, s99, 56")
        A("s_lshl_b64 exec, 1, s99")
        A("s_waitcnt lgkmcnt(0)")
        A(f"v_mov_b32 {v(self.vr)}, s96")
        if k == 0:
            A("s_lshl_b64 exec, exec, 7")
            A(f"v_mov_b32 {v(self.vr)}, s0")
        A("s_mov_b64 exec, -1")

    def dump(self, vt):
        if not self.on:
            return
        A = self.A
        A(f"s_lshl_b32 s96, {s(S_GID)}, 2")
        A(f"s_add_u32 s96, s96, {s(S_WAVE)}")
        A("s_lshl_b32 s96, s96, 8")
        A(f"s_add_u32 s96, s96, {DIAG}")
        A(f"v_lshlrev_b32 {v(vt)}, 2, v0")
        A(f"buffer_store_dword {v(self.vr)}, {v(vt)}, {WS}, s96 offen")


class Fine:
    def __init__(self, A, cfg, regs=range(16, 46, 2)):
        self.A, self.on, self.n, self.r = A, cfg.timing == 5, 0, list(regs)

    def __call__(self):
        if self.on:
            self.A(f"s_memtime {s(self.r[self.n], 2)}")
            self.n += 1

    def dump(self, s_i, which, vt):
        if not self.on:
            return
        A = self.A
        lab = A.newlabel("fd")
        A(f"s_cmp_lg_u32 {s(s_i)}, {which}")
        A(f"s_cbranch_scc1 {lab}")
        A("s_waitcnt lgkmcnt(0)")
        A(f"s_lshl_b32 s96, {s(S_GID)}, 2")
        A(f"s_add_u32 s96, s96, {s(S_WAVE)}")
        A("s_lshl_b32 s96, s96, 8")
        A(f"s_add_u32 s96, s96, {DIAG}")
        A(f"v_mov_b32 {v(vt + 1)}, 0")
        for k in range(self.n):
            A(f"s_sub_u32 s97, {s(self.r[k])}, {s(self.r[0])}")
            A(f"v_mov_b32 {v(vt)}, s97")
            A(f"buffer_store_dword {v(vt)}, {v(vt + 1)}, {WS}, s96 offen offset:{4 * k}")
        A("s_waitcnt vmcnt(0)")
        A.label(lab)


class Loader:
    SLOT = 49152

    def __init__(self, A, vt, st):
        self.A, self.vt, self.st = A, vt, st
        self.stages = []

    def prep_a(self):
        A, vt = self.A, self.vt
        for k in range(3):
            A(f"v_add_u32 {v(vt + 4)}, {64 * k}, v0")
            A(f"v_mul_u32_u24 {v(vt + 5)}, 2731, {v(vt + 4)}")
            A(f"v_lshrrev_b32 {v(vt + 5)}, 16, {v(vt + 5)}")
            A(f"v_mul_u32_u24 {v(vt + k)}, {12288 - 384}, {v(vt + 5)}")
            A(f"v_lshl_add_u32 {v(vt + k)}, {v(vt + 4)}, 4, {v(vt + k)}")

    def dma_a(self, s_org, row0):
        def f(base):
            A, vt, st = self.A, self.vt, self.st
            for gq in range(4):
                A(f"s_add_u32 {s(st + 1)}, {s(s_org)}, {(row0 + 8 * gq) * 12288}")
                for k in range(3):
                    A(f"s_add_u32 m0, {s(st)}, {base + (gq * 3 + k) * 1024}")
                    A(f"buffer_load_dwordx4 {v(vt + k)}, {s(SRD_W, 4)}, {s(st + 1)} offen lds")
            return 12
        return f

    def dma_b(self, s_org, off, v16, pre=None):
        def f(base):
            A, st = self.A, self.st
            if pre:
                pre()
            for i in range(10):
                if i % 4 == 0:
                    A(f"s_add_u32 {s(st + 1)}, {s(s_org)}, {off + i * 1024}")
                    A(f"s_add_u32 m0, {s(st + 2)}, {base + i * 1024}")
                A(f"buffer_load_dwordx4 {v(v16)}, {s(SRD_W, 4)}, {s(st + 1)} offen offset:{(i % 4) * 1024} lds")
            return 10
        return f

    def add(self, dma, groups):
        self.stages.append((dma, groups))

    def emit(self):
        A, vt, st = self.A, self.vt, self.st
        A(f"s_mul_i32 {s(st)}, {s(S_WAVE)}, 12288")
        A(f"s_mul_i32 {s(st + 2)}, {s(S_WAVE)}, 10240")
        n = len(self.stages)
        cnt = {}
        for i in range(min(3, n)):
            cnt[i] = self.stages[i][0]((i % 3) * self.SLOT)
        for i in range(n):
            A(f"s_waitcnt vmcnt({cnt.get(i + 1, 0) + cnt.get(i + 2, 0)})")
            A("s_barrier")
            k = 0
            for gi, (va, reads) in enumerate(self.stages[i][1]):
                A(f"v_add_u32 {v(vt + 3 + gi)}, {(i % 3) * self.SLOT}, {v(va)}")
                for dst, off in reads:
                    A(f"ds_read_b64_tr_b16 {dst}, {v(vt + 3 + gi)} offset:{off}")
                    k += 1
                    if k % 12 == 0:
                        A("s_waitcnt lgkmcnt(3)")
            A("s_waitcnt lgkmcnt(0)")
            A("s_barrier")
            if i + 3 < n:
                cnt[i + 3] = self.stages[i + 3][0]((i % 3) * self.SLOT)


def reg(loc, off=0, n=2):
    k, r = loc
    return a(r + off, n) if k == "a" else v(r + off, n)
```

```python
from common2 import *
from chain2 import T, stats_lane
from bulk2 import *

MF32 = "v_mfma_f32_32x32x16_bf16"
GELU_C0 = -2.0 * math.sqrt(2.0 / math.pi) * math.log2(math.e)
GELU_C1 = GELU_C0 * 0.044715


class WLoader:
    def __init__(self, A, vt, st):
        self.A, self.vt, self.st = A, vt, st

    def run(self, s_org, stride, Tn, nk, dst, m32):
        A, vt, st = self.A, self.vt, self.st
        A(f"s_mul_i32 {s(st)}, {s(S_WAVE)}, 40960")
        per = 20 // Tn
        chunks = [list(range(j, min(j + per, nk))) for j in range(0, nk, per)]
        lpr = 2 * Tn
        sh = {4: 2, 8: 3}[lpr]
        A(f"v_lshrrev_b32 {v(vt + 3)}, {sh}, v0")
        A(f"v_mul_u32_u24 {v(vt + 3)}, {stride}, {v(vt + 3)}")
        A(f"v_and_b32 {v(vt + 4)}, {lpr - 1}, v0")
        A(f"v_lshl_add_u32 {v(vt)}, {v(vt + 4)}, 4, {v(vt + 3)}")
        if m32:
            A(f"v_bfe_u32 {v(vt + 3)}, v0, 2, 2")
            A(f"v_lshrrev_b32 {v(vt + 4)}, 5, v0")
            A(f"v_lshl_add_u32 {v(vt + 3)}, {v(vt + 4)}, 2, {v(vt + 3)}")
            A(f"v_mul_u32_u24 {v(vt + 3)}, {Tn * 32}, {v(vt + 3)}")
            A(f"v_and_b32 {v(vt + 4)}, 1, v0")
            A(f"v_lshl_add_u32 {v(vt + 3)}, {v(vt + 4)}, 3, {v(vt + 3)}")
            A(f"v_bfe_u32 {v(vt + 4)}, v0, 1, 1")
            A(f"v_lshl_add_u32 {v(vt + 3)}, {v(vt + 4)}, 5, {v(vt + 3)}")
            A(f"v_bfe_u32 {v(vt + 4)}, v0, 4, 1")
            A(f"v_lshl_add_u32 {v(vt + 3)}, {v(vt + 4)}, 4, {v(vt + 3)}")
        else:
            dense_lane(A, vt + 3, vt + 4, Tn * 32)
        A(f"v_add_u32 {v(vt + 1)}, {s(st)}, {v(vt + 3)}")

        def dma(ci):
            off = (ci & 1) * 20480
            for j in chunks[ci]:
                for i in range(Tn):
                    A(f"s_add_u32 m0, {s(st)}, {off}")
                    A(f"s_add_u32 {s(st + 2)}, {s(s_org)}, {(32 * j + i * (32 // Tn)) * stride}")
                    A(f"buffer_load_dwordx4 {v(vt)}, {s(SRD_W, 4)}, {s(st + 2)} offen lds")
                    off += 1024
            return len(chunks[ci]) * Tn

        def trread(ci):
            off = (ci & 1) * 20480
            cnt = 0
            for j in chunks[ci]:
                for x in range(2 if m32 else Tn):
                    for hf in range(2):
                        o = (hf * 16 + x * 8) * Tn * 32 if m32 else hf * 16 * Tn * 32 + x * 32
                        A(f"ds_read_b64_tr_b16 {reg(dst(x, j), 2 * hf)}, {v(vt + 1)} offset:{off + o}")
                        cnt += 1
                        if cnt % 12 == 0:
                            A("s_waitcnt lgkmcnt(4)")
                off += Tn * 1024
            A("s_waitcnt lgkmcnt(0)")
        cn = {0: dma(0), 1: dma(1)}
        for ci in range(len(chunks)):
            A(f"s_waitcnt vmcnt({cn.get(ci + 1, 0)})")
            trread(ci)
            if ci + 2 < len(chunks):
                cn[ci + 2] = dma(ci + 2)


def late_start(A, cfg, nwg, vt):
    if not cfg.wlate:
        return
    init_barrier_wait(A, vt, nwg, cfg)
    A(f"s_mov_b32 {s(T)}, {flag_row(F_XIN if cfg.wlate == 1 else F_QK)}")
    A(f"v_mov_b32 {v(vt + 1)}, 0")
    park_spin(A, vt + 1, vt, T, 32)


def gelu8(B, X, out, tm, k, pk):
    if pk:
        for i in range(0, 8, 2):
            B(f"v_pk_mul_f32 {v(tm + i, 2)}, {v(X + i, 2)}, {v(X + i, 2)}")
        for i in range(0, 8, 2):
            B(f"v_pk_fma_f32 {v(tm + i, 2)}, {v(tm + i, 2)}, {v(k, 2)}, {v(k, 2)} op_sel:[0,1,0] op_sel_hi:[1,1,0]")
        for i in range(0, 8, 2):
            B(f"v_pk_mul_f32 {v(tm + i, 2)}, {v(tm + i, 2)}, {v(X + i, 2)}")
    else:
        for i in range(8):
            B(f"v_mul_f32 {v(tm + i)}, {v(X + i)}, {v(X + i)}")
        for i in range(8):
            B(f"v_fma_f32 {v(tm + i)}, {v(tm + i)}, {v(k + 1)}, {v(k)}")
        for i in range(8):
            B(f"v_mul_f32 {v(tm + i)}, {v(tm + i)}, {v(X + i)}")
    for i in range(8):
        B(f"v_exp_f32 {v(tm + i)}, {v(tm + i)}")
    if pk:
        for i in range(0, 8, 2):
            B(f"v_pk_fma_f32 {v(tm + i, 2)}, {v(tm + i, 2)}, {v(k + 2, 2)}, {v(k + 2, 2)} op_sel_hi:[1,0,0]")
    else:
        for i in range(8):
            B(f"v_fma_f32 {v(tm + i)}, {v(tm + i)}, {v(k + 2)}, {v(k + 2)}")
    for i in range(8):
        B(f"v_rcp_f32 {v(tm + i)}, {v(tm + i)}")
    if pk:
        for i in range(0, 8, 2):
            B(f"v_pk_mul_f32 {v(X + i, 2)}, {v(X + i, 2)}, {v(tm + i, 2)}")
    else:
        for i in range(8):
            B(f"v_mul_f32 {v(X + i)}, {v(X + i)}, {v(tm + i)}")
    for i in range(4):
        B(f"v_cvt_pk_bf16_f32 {v(out + i)}, {v(X + 2 * i)}, {v(X + 2 * i + 1)}")


def groups_sum(B, t):
    for op in ("v_permlane32_swap_b32", "v_permlane16_swap_b32"):
        B(f"v_mov_b32 {v(t + 2)}, {v(t)}")
        B(f"v_mov_b32 {v(t + 3)}, {v(t + 1)}")
        B(f"{op} {v(t)}, {v(t + 2)}")
        B(f"{op} {v(t + 1)}, {v(t + 3)}")
        B(f"v_add_f32 {v(t)}, {v(t)}, {v(t + 2)}")
        B(f"v_add_f32 {v(t + 1)}, {v(t + 1)}, {v(t + 3)}")


def unpack(B, dst, src, n):
    for i in range(n):
        B(f"v_lshlrev_b32 {v(dst + 2 * i)}, 16, {v(src + i)}")
        B(f"v_and_b32 {v(dst + 2 * i + 1)}, 0xffff0000, {v(src + i)}")


def spin_until(A, loads, check, sleep):
    top, ok = A.newlabel("su"), A.newlabel("so")
    A.label(top)
    for x in loads:
        A(x)
    A("s_waitcnt vmcnt(0)")
    check()
    A(f"s_cbranch_vccz {ok}")
    spin_back(A, top, sleep)
    A.label(ok)


def gen_w123(kind):
    def gen(A, cfg, nwg):
        nm = f"W{kind}"
        V_L16, V_FO, V_SA0, V_SA, V_STP, V_SAD, V_XA, V_CO, V_ADJ = range(1, 10)
        V_FV = 10
        V_T = 12
        V_SH, V_IN = 20, 22
        V_ST = 24
        V_FR = 32
        V_ACC = 64
        V_CS = 80
        V_SR = 88
        V_PK = 108
        V_TM = 116
        V_Y = 124
        V_S2 = 148
        V_CV = 156
        S_I, S_L, S_S, S_NL, S_NS, S_IDX, S_BUF, S_DEF, S_LW, S_PF = range(50, 60)
        S_NSRC, S_NST, S_NFL, S_NLD, S_OUT, S_XS, S_FLG, S_SB = range(68, 76)
        S_MF = 76
        S_EM = 78
        S_NCR, S_PC, S_PT, S_NE, S_TS = range(82, 87)

        A.label("ROLE_" + nm)
        A(f"v_lshlrev_b32 {v(V_L16)}, 4, v0")
        A(f"s_lshl2_add_u32 {s(S_IDX)}, {s(S_ROLE)}, {s(S_WAVE)}")
        A(f"v_min_u32 {v(V_FO)}, 39, v0")
        A(f"v_lshlrev_b32 {v(V_FO)}, 3, {v(V_FO)}")
        cnt_setup(A, V_CO, V_ADJ, V_T, *{1: (C_X1, 20, 3), 2: (C_H, 20, -1, C_W4, 20, 4), 3: (C_X1, 20, 0, C_W4, 20, 4)}[kind])
        A(f"v_bfe_u32 {v(V_T)}, v0, 4, 1")
        A(f"v_mul_u32_u24 {v(V_SA0)}, 2560, {v(V_T)}")
        A(f"v_lshrrev_b32 {v(V_T)}, 5, v0")
        A(f"v_lshl_add_u32 {v(V_SA0)}, {v(V_T)}, 7, {v(V_SA0)}")
        A(f"v_and_b32 {v(V_SAD)}, 15, v0")
        A(f"v_lshlrev_b32 {v(V_SAD)}, 3, {v(V_SAD)}")
        A(f"v_add_u32 {v(V_SA0)}, {v(V_SA0)}, {v(V_SAD)}")
        A(f"v_add_u32 {v(V_SA0)}, 0xa000, {v(V_SA0)}")
        A(f"s_mul_i32 {s(S_LW)}, {s(S_WAVE)}, 10240")
        A(f"s_lshl_b32 {s(S_SB)}, {s(S_WAVE)}, 10")
        A(f"s_add_u32 {s(S_SB)}, {s(S_SB)}, 40960")
        A(f"s_mov_b64 {s(S_MF, 2)}, 0")
        for r in (S_PF, S_PC, S_PT):
            A(f"s_mov_b32 {s(r)}, 0")
        if kind == 2:
            A(f"s_lshr_b32 {s(T)}, {s(S_WAVE)}, 1")
            A(f"s_add_u32 {s(T)}, {s(T)}, 1")
            A(f"s_sub_u32 {s(T + 1)}, 32, {s(T)}")
            A(f"s_add_u32 {s(T)}, {s(T)}, 32")
            A(f"s_bitcmp1_b32 {s(S_WAVE)}, 0")
            A(f"s_cselect_b32 {s(T)}, {s(T)}, {s(T + 1)}")
            for tt in range(2):
                A(f"v_and_b32 {v(V_T)}, 15, v0")
                A(f"v_add_u32 {v(V_T)}, {s(T)}, {v(V_T)}")
                if tt:
                    A(f"v_add_u32 {v(V_T)}, 16, {v(V_T)}")
                d = V_IN + tt
                A(f"v_lshrrev_b32 {v(V_T + 1)}, 5, {v(V_T)}")
                A(f"v_cmp_ne_u32 {s(S_EM + 2 * tt, 2)}, 1, {v(V_T + 1)}")
                A(f"v_bfe_u32 {v(V_T + 1)}, {v(V_T)}, 4, 1")
                A(f"v_lshlrev_b32 {v(d)}, 10, {v(V_T + 1)}")
                A(f"v_and_b32 {v(V_T + 1)}, 15, {v(V_T)}")
                A(f"v_lshl_add_u32 {v(d)}, {v(V_T + 1)}, 4, {v(d)}")
                A(f"v_lshrrev_b32 {v(V_T + 1)}, 4, v0")
                A(f"v_lshl_add_u32 {v(d)}, {v(V_T + 1)}, 8, {v(d)}")
        else:
            A(f"v_mov_b32 {v(V_SH)}, {v(V_L16)}")
            A(f"v_add_u32 {v(V_SH + 1)}, 0x400, {v(V_L16)}")
        init_barrier_arrive(A, V_T)
        late_start(A, cfg, nwg, V_T)
        stride = 3072 if kind == 3 else 1280
        make_srd(A, SRD_W, (P_W1, P_W2, P_W3)[kind - 1], 640 * stride)
        A(f"s_lshl_b32 {s(T)}, {s(S_IDX)}, 6")
        WLoader(A, V_T, T + 3).run(T, stride, 2, 20, lambda e, j: ("a", (j * 2 + e) * 4), False)
        if kind != 2:
            for i in range(4):
                A(f"v_mov_b32 {v(V_FR + i)}, 0x3f803f80")
            for k in range(40):
                ac = v(V_CS + 4 * (k & 1), 4)
                A(f"{MF16} {ac}, {a(4 * k, 4)}, {v(V_FR, 4)}, {'0' if k < 2 else ac}")
        osz, obase = (XSEG, XSEGS, GSEG)[kind - 1], (HB, X1B, GB)[kind - 1]
        A(f"v_lshrrev_b32 {v(V_T)}, 4, v0")
        A(f"v_mul_u32_u24 {v(V_T)}, {osz}, {v(V_T)}")
        A(f"v_lshl_add_u32 {v(V_T)}, {v(V_SAD)}, 4, {v(V_T)}")
        A(f"s_lshl_b32 {s(T)}, {s(S_IDX)}, 11")
        for l in range(2):
            A(f"s_add_u32 {s(T + 1)}, {s(T)}, {obase + 4 * l * osz}")
            A(f"buffer_load_dword {v(V_T + 1)}, {v(V_T)}, {WS}, {s(T + 1)} offen sc1")
            if kind == 2:
                A(f"s_lshl_b32 {s(T + 1)}, {s(S_IDX)}, 8")
                A(f"s_add_u32 {s(T + 1)}, {s(T + 1)}, {obase + 4 * l * osz + 40960}")
                A(f"buffer_load_dword {v(V_T + 1)}, {v(V_T)}, {WS}, {s(T + 1)} offen sc1")
        A("s_waitcnt vmcnt(0)")
        A("s_barrier")
        if not cfg.wlate:
            init_barrier_wait(A, V_T, nwg, cfg)

        def ahead(d):
            L = [f"s_add_u32 {s(T + 2)}, {s(S_I)}, {d}", f"s_min_u32 {s(T + 2)}, {s(T + 2)}, 127"]
            L += item_list(T + 2, S_NL, S_NS, cfg.LAG + cfg.wd, cfg.first, T)
            L += [f"s_lshl_b32 {s(S_NCR)}, {s(S_NL)}, 15", f"s_add_u32 {s(S_NCR)}, {s(S_NCR)}, {flag_row(F_H)}"]
            if kind == 3:
                L += ["SAMPLE", f"s_and_b32 {s(T)}, {s(S_NS)}, 3", f"s_lshl2_add_u32 {s(T)}, {s(S_NL)}, {s(T)}",
                      f"s_mul_i32 {s(S_NST)}, {s(T)}, {XSEGS}", f"s_add_u32 {s(S_NST)}, {s(S_NST)}, {X1B}"]
            else:
                L += [f"s_lshl_b32 {s(T)}, {s(S_NL)}, 6", f"s_add_u32 {s(T)}, {s(T)}, {s(S_NS)}"]
                if kind == 1:
                    L += [f"s_lshl_b32 {s(S_NFL)}, {s(T)}, 9", f"s_add_u32 {s(S_NFL)}, {s(S_NFL)}, {flag_row(F_XM)}"]
                L += ["SAMPLE", f"s_mul_i32 {s(S_NST)}, {s(T)}, {XSEGS}", f"s_add_u32 {s(S_NST)}, {s(S_NST)}, {XM}"]
            if kind == 2:
                L += [f"s_mul_i32 {s(S_NSRC)}, {s(S_NL)}, {4 * XSEG}", f"s_add_u32 {s(S_NSRC)}, {s(S_NSRC)}, {HB}", f"s_add_u32 {s(S_NSRC)}, {s(S_NSRC)}, {s(S_LW)}",
                      f"s_and_b32 {s(T)}, {s(S_NS)}, 3", f"s_mul_i32 {s(S_NFL)}, {s(T)}, {XSEG}",
                      f"s_and_b32 {s(T)}, {s(S_WAVE)}, 1", f"s_lshl1_add_u32 {s(T)}, {s(T)}, {s(S_NS)}", f"s_sub_u32 {s(T)}, {s(T)}, 1",
                      f"s_and_b32 {s(T + 1)}, {s(T)}, 3", f"s_mul_i32 {s(S_NE)}, {s(T + 1)}, {XSEG}",
                      f"s_and_b32 {s(T)}, {s(T)}, 64", f"s_lshl_b32 {s(T)}, {s(T)}, 23", f"s_add_u32 {s(S_NE)}, {s(S_NE)}, {s(T)}"]
                for tt in range(2):
                    L += [f"v_add_u32 {v(V_SH + tt)}, {s(S_NFL)}, {v(V_IN + tt)}", f"v_add_u32 {v(V_T + 6)}, {s(S_NE)}, {v(V_IN + tt)}",
                          f"v_cndmask_b32 {v(V_SH + tt)}, {v(V_SH + tt)}, {v(V_T + 6)}, {s(S_EM + 2 * tt, 2)}"]
            else:
                L += [f"s_add_u32 {s(S_NSRC)}, {s(S_NST)}, {s(S_LW)}"]
            L += [f"s_add_u32 {s(S_NLD)}, {s(S_BUF)}, {s(S_LW)}"]
            return L

        def samples():
            L = [f"buffer_load_dword {v(V_CV)}, {v(V_CO)}, {WS}, {s(S_NCR)} offen sc1"]
            if kind == 1:
                L.append(f"buffer_load_dwordx2 {v(V_FV, 2)}, {v(V_FO)}, {WS}, {s(S_NFL)} offen sc1")
            return L

        def check(B=A):
            B(f"v_add_u32 {v(V_CV)}, {v(V_CV)}, {v(V_ADJ)}")
            if kind == 1:
                B(f"v_min3_u32 {v(V_FV)}, {v(V_FV)}, {v(V_FV + 1)}, 1")
                B(f"v_mul_u32_u24 {v(V_CV)}, {v(V_CV)}, {v(V_FV)}")
            B(f"v_cmp_ge_i32 vcc, {s(S_NS)}, {v(V_CV)}")

        def dma(tt, src, st_, t):
            L = []
            for jl in range(5):
                e = ""
                if jl % 2 == 0:
                    e = f"s_add_u32 m0, {s(S_NLD)}, {jl * 2048 + tt * 1024}\ns_add_u32 {s(t)}, {s(src)}, {jl * 2048}\n"
                L.append(e + f"buffer_load_dwordx4 {v(V_SH + tt)}, {WS}, {s(t)} offen offset:{(jl & 1) * 2048} sc1 lds")
            if tt == 0:
                L.append(f"s_add_u32 m0, {s(S_BUF)}, {s(S_SB)}\ns_add_u32 {s(t)}, {s(st_)}, {s(S_SB)}\nbuffer_load_dwordx4 {v(V_L16)}, {WS}, {s(t)} offen sc1 lds")
                L.append(f"buffer_load_dwordx4 {v(V_L16)}, {WS}, {s(t)} offen offset:1024 sc1 lds")
            return L

        def cur():
            L = [f"s_and_b32 {s(T + 3)}, {s(S_S)}, 3", f"s_lshl2_add_u32 {s(T + 3)}, {s(S_L)}, {s(T + 3)}",
                 f"s_mul_i32 {s(S_OUT)}, {s(T + 3)}, {osz}", f"s_add_u32 {s(S_OUT)}, {s(S_OUT)}, {obase}"]
            if kind == 2:
                L += [f"s_lshl_b32 {s(S_XS)}, {s(S_IDX)}, 8", f"s_add_u32 {s(S_XS)}, {s(S_XS)}, {s(S_OUT)}", f"s_add_u32 {s(S_XS)}, {s(S_XS)}, 40960"]
            L += [f"s_lshl_b32 {s(T + 3)}, {s(S_IDX)}, 11", f"s_add_u32 {s(S_OUT)}, {s(S_OUT)}, {s(T + 3)}"]
            if cfg.timing == 4:
                L += [f"s_lshl_b32 {s(S_TS)}, {s(S_L)}, 6", f"s_add_u32 {s(S_TS)}, {s(S_TS)}, {s(S_S)}", f"s_lshl_b32 {s(S_TS)}, {s(S_TS)}, 9",
                      f"s_lshl2_add_u32 {s(S_TS)}, {s(S_IDX)}, {s(S_TS)}", f"s_add_u32 {s(S_TS)}, {s(S_TS)}, {flag_row((F_H, F_X1, F_G)[kind - 1])}"]
            return L

        def stats(B):
            m, r = V_ST + 3, V_ST + 4
            stats_sum(B, V_SR, m, "v_permlane16_swap_b32")
            finish_stats(B, m, r, kind == 1)
            if kind == 2:
                B(f"v_mul_f32 {v(m)}, {v(m)}, {v(r)}")
                B(f"v_mov_b32 {v(V_ST)}, {v(r)}")
                K = (0, 3)
            else:
                B(f"v_mul_f32 {v(V_ST + 1)}, {v(r)}, {v(r)}")
                B(f"v_mul_f32 {v(V_ST)}, {f32(GELU_C0)}, {v(r)}")
                B(f"v_rcp_f32 {v(V_ST + 2)}, {v(r)}")
                B(f"v_mul_f32 {v(V_ST + 1)}, {f32(0.044715)}, {v(V_ST + 1)}")
                B(f"v_mul_f32 {v(V_ST + 1)}, {v(V_ST + 1)}, {v(V_ST)}")
                K = (0, 1, 2, 3)
            for k in K:
                if not (kind == 2 and k == 0):
                    B(f"v_mov_b32 {v(V_ST + 4 + k)}, {v(V_ST + k)}")
            for k in K:
                B(f"v_permlane32_swap_b32 {v(V_ST + k)}, {v(V_ST + 4 + k)}")

        def ycalc(B, tt):
            U = V_Y + 8 + 8 * tt
            unpack(B, U, V_Y + 4 * tt, 4)
            for i in range(8):
                B(f"v_fma_f32 {v(U + i)}, {v(U + i)}, {v(V_ST + 4 * tt)}, -{v(V_ST + 4 * tt + 3)}")

        A(f"s_mov_b32 {s(S_I)}, 0")
        A(f"s_mov_b32 {s(S_BUF)}, 0")
        for x in ahead(0):
            if x != "SAMPLE":
                A(x)
        stamp = Stamp(A, cfg, S_I, V_STP, 2 * cfg.t0 - cfg.LAG)
        stamp.init()
        if cfg.slow:
            A(f"s_cmp_lg_u32 {s(S_MODE)}, 0")
            A(f"s_cbranch_scc1 {nm}_S_WAIT")

        def body(sx, LS):
            me = f"{nm}_{sx}_"
            A.label(me + "WAIT")
            spin_until(A, samples(), check, cfg.wsl)
            for x in dma(0, S_NSRC, S_NST, T + 5) + dma(1, S_NSRC, S_NST, T + 5):
                A(x)
            A("s_waitcnt vmcnt(5)")
            A.label(me + "LOOP")
            lg = Cnt(A, "lgkmcnt", 15)
            vm = Cnt(A, "vmcnt", 60)
            A(f"v_add_u32 {v(V_XA)}, {s(S_BUF)}, {v(V_L16)}")
            A(f"v_add_u32 {v(V_SA)}, {s(S_BUF)}, {v(V_SA0)}")
            fine = Fine(A, cfg)
            fine()
            A("s_barrier")
            fine()
            stamp(0)

            def rd(n):
                lg.issue(f"ds_read_b128 {v(V_FR + (n % 8) * 4, 4)}, {v(V_XA)} offset:{(n % 20) * 2048 + (n // 20) * 1024}", ("x", n))
            for n in range(4):
                rd(n)
            A(f"s_xor_b32 {s(S_BUF)}, {s(S_BUF)}, {XSEGS}")
            A(f"s_mov_b32 {s(S_L)}, {s(S_NL)}")
            A(f"s_mov_b32 {s(S_S)}, {s(S_NS)}")
            A(f"s_lshl2_add_u32 {s(S_FLG)}, {s(S_IDX)}, {s(S_NCR)}")
            A(f"s_add_u32 {s(S_FLG)}, {s(S_FLG)}, {4 * (C_H, C_X1, C_G)[kind - 1]}")
            if kind == 2:
                A(f"s_lshl_b32 {s(T + 4)}, {s(S_IDX)}, 11\ns_add_u32 {s(T + 4)}, {s(T + 4)}, {s(S_NST)}")
                for k in range(2):
                    vm.issue(f"buffer_load_dwordx4 {v(V_Y + 4 * k, 4)}, {v(V_L16)}, {WS}, {s(T + 4)} offen offset:{k * 1024} sc1", "y")
            ah = ahead(1)
            for x in ah[:8]:
                A(x)
            ops = []
            for n in range(40):
                for e in range(2):
                    ac = v(V_ACC + 8 * (n // 20) + 4 * e, 4)
                    o = dict(fmt=f"{MF16} {ac}, {{W}}, {v(V_FR + (n % 8) * 4, 4)}, {'0' if n % 20 == 0 else ac}", w=("a", ((n % 20) * 2 + e) * 4),
                             need=[("x", n | 1 if n > 3 else n)], post=[])
                    if n < 3:
                        o["post"].append(lambda k=4 + 2 * n + e: rd(k))
                    elif e == 0 and n + 7 < 40:
                        o["post"].append(lambda n=n: rd(n + 7))
                    ops.append(o)
            st = Stream(A, lg, 0, 1, 0, 4)
            sr = stats_reads(lg, V_SA, V_SR, V_T)
            fl = [sr[0]]
            for k, x in enumerate(sr[1:]):
                ops[(5, 7, 8, 9, 11)[k]]["post"].append(x)
            ks = ah.index("SAMPLE")
            st.sq = ah[8:ks]

            def mix():
                lg.wait("sr")
                fl.extend(capture(stats))
            ops[15]["post"].insert(0, mix)

            def prev_flag():
                A("s_waitcnt vmcnt(0)")
                vm.q = []
                cnt_store(A, V_T + 7, V_L16, S_PC, S_PF, LS, mask=S_MF, ts=S_PT)

            def midbar():
                prev_flag()
                A("s_barrier")
                st.flush()
                st.sq.extend(cur() + [x for x in ah[ks + 1:] if x.startswith("s_")])
                if kind == 2:
                    fl.extend(capture(lambda B: ycalc(B, 0)))
            ops[25]["post"].insert(0, midbar)

            def epi(B, tt, pk):
                X = V_ACC + 8 * tt
                P = V_PK + 4 * tt
                if kind != 2:
                    if pk:
                        for i in range(0, 8, 2):
                            B(f"v_pk_fma_f32 {v(X + i, 2)}, {v(V_CS + i, 2)}, {v(V_ST + 4 * tt + 2, 2)}, {v(X + i, 2)} op_sel:[0,1,0] op_sel_hi:[1,1,1] neg_lo:[0,1,0] neg_hi:[0,1,0]")
                    else:
                        for i in range(8):
                            B(f"v_fma_f32 {v(X + i)}, -{v(V_ST + 4 * tt + 3)}, {v(V_CS + i)}, {v(X + i)}")
                    gelu8(B, X, P, V_TM, V_ST + 4 * tt, pk)
                else:
                    for i in range(8):
                        B(f"v_add_f32 {v(X + i)}, {v(X + i)}, {v(V_Y + 8 + 8 * tt + i)}")
                    for i in range(0, 8, 2):
                        rnd2(B, P + i // 2, X + i, X + i + 1)
                B(lambda: vm.issue(f"buffer_store_dwordx4 {v(P, 4)}, {v(V_L16)}, {WS}, {s(S_OUT)} offen offset:{tt * 1024}{LS}"))
                if kind == 2:
                    stats_lane(B, [X + i for i in range(8)], V_S2 + 2 * tt)
                    if tt == 1:
                        t = V_S2
                        B(f"v_permlane32_swap_b32 {v(t)}, {v(t + 2)}")
                        B(f"v_permlane32_swap_b32 {v(t + 1)}, {v(t + 3)}")
                        B(f"v_pk_add_f32 {v(t, 2)}, {v(t, 2)}, {v(t + 2, 2)}")
                        B(f"v_mov_b64 {v(t + 2, 2)}, {v(t, 2)}")
                        B(f"v_permlane16_swap_b32 {v(t)}, {v(t + 2)}")
                        B(f"v_permlane16_swap_b32 {v(t + 1)}, {v(t + 3)}")
                        B(f"v_pk_add_f32 {v(t, 2)}, {v(t, 2)}, {v(t + 2, 2)}")
                        B(lambda: vm.issue(f"buffer_store_dwordx2 {v(t, 2)}, {v(V_FO)}, {WS}, {s(S_XS)} offen{LS}"))

            def second():
                fl.extend(capture(lambda B: epi(B, 0, False)))
                if kind == 2:
                    fl.extend(capture(lambda B: ycalc(B, 1)))
            ops[42]["post"].append(second)
            D = cfg.wdp1 if kind == 1 else cfg.wdp
            for k, x in enumerate(samples()):
                ops[D - (cfg.ws1 if kind == 1 else cfg.ws) + 2 * k]["post"].append(lambda x=x: vm.issue(x, "fv"))

            def dec1():
                st.flush()
                vm.wait("fv")
                fl[0:0] = [x for x in ah if x.startswith("v_")] + capture(check) + [
                    f"s_cmp_lg_u64 vcc, 0\ns_cselect_b32 {s(S_DEF)}, {OOR}, 0", f"s_or_b32 {s(T + 6)}, {s(S_NSRC)}, {s(S_DEF)}", f"s_or_b32 {s(T + 7)}, {s(S_NST)}, {s(S_DEF)}"]
            ops[D]["post"].insert(0, dec1)
            dq = [(x, "dma") for x in dma(0, T + 6, T + 7, T + 5)] + [(x, "b") for x in dma(1, T + 6, T + 7, T + 5)]

            def nextdma():
                if dq and not [x for x in fl if not callable(x) and x.startswith("s_")]:
                    vm.issue(*dq.pop(0))
            D2 = D + (9 if kind == 2 else 5)
            for k in range(D2, 80, cfg.wg):
                ops[k]["post"].append(nextdma)
            for k in (0, 10, 24, 26, 40, D - 1, D + 1, D2, 79):
                ops[k]["post"].insert(0, fine)
            st.run(ops, fl)
            stamp(1)
            rest = fl + capture(lambda B: epi(B, 1, cfg.wpk))
            fl = []
            per = max(1, (len(rest) - 4) // max(len(dq), 1))
            for n, x in enumerate(rest):
                if n % per == 0:
                    nextdma()
                x() if callable(x) else A(x)
            assert not dq
            stamp(2)
            A(f"s_mov_b32 {s(S_PF)}, {s(S_FLG)}")
            A(f"s_add_u32 {s(S_PC)}, {s(S_S)}, 1")
            if kind == 1:
                A(f"s_cmp_eq_u32 {s(S_S)}, 63")
                A(f"s_cselect_b32 {s(S_PC)}, 65, {s(S_PC)}")
            if cfg.timing == 4:
                A(f"s_mov_b32 {s(S_PT)}, {s(S_TS)}")
            A(f"s_mov_b64 {s(S_MF, 2)}, -1")
            A(f"s_add_u32 {s(S_I)}, {s(S_I)}, 1")
            A(f"s_cmp_eq_u32 {s(S_I)}, 128")
            A(f"s_cselect_b32 {s(S_DEF)}, 1, {s(S_DEF)}")
            fine()
            vm.wait("dma")
            fine()
            fine.dump(S_I, cfg.t0, V_T)
            A(f"s_cmp_eq_u32 {s(S_DEF)}, 0")
            A(f"s_cbranch_scc1 {me}LOOP")
            prev_flag()
            A(f"s_mov_b64 {s(S_MF, 2)}, 0")
            A(f"s_cmp_lt_u32 {s(S_I)}, 128")
            A(f"s_cbranch_scc1 {me}WAIT")
            stamp.dump(V_T)
            A("s_endpgm")
        if kind == 2:
            A(f"v_lshrrev_b32 {v(V_FO)}, 5, v0")
            A(f"v_lshl_add_u32 {v(V_FO)}, {v(V_FO)}, 7, {v(V_SAD)}")
        body("F", cfg.LS)
        if cfg.slow:
            body("S", " sc1")
    return gen


def gen_w4(A, cfg, nwg):
    V_L16, V_FO, V_FV, V_ONE, V_SAD, V_OA, V_XB, V_STP = range(1, 9)
    V_T = 12
    V_FR = 20
    V_ACC = 52
    V_XX = 68
    V_XU = 84
    V_PK = 100
    V_S2 = 108
    S_S, S_L, S_J, S_G, S_X1, S_XM, S_DEF, S_LW, S_PF, S_CR = range(50, 60)
    S_G0, S_X10, S_XO, S_OO, S_CA, S_NS, S_NG = range(68, 75)
    S_MF = 76
    SRD_O = 80

    def wl(e, j):
        n = j * 2 + e
        return ("a", n * 4) if n < 64 else ("v", 128 + (n - 64) * 4)
    A.label("ROLE_W4")
    A(f"v_lshlrev_b32 {v(V_L16)}, 4, v0")
    A(f"v_add_u32 {v(V_XB)}, 0xc000, {v(V_L16)}")
    A(f"v_mov_b32 {v(V_ONE)}, 1")
    A(f"s_cmp_ge_u32 {s(S_ROLE)}, 5")
    A(f"s_cselect_b32 {s(S_L)}, 1, 0")
    A(f"s_mul_i32 {s(T)}, {s(S_L)}, 5")
    A(f"s_sub_u32 {s(T)}, {s(S_ROLE)}, {s(T)}")
    A(f"s_lshl2_add_u32 {s(S_J)}, {s(T)}, {s(S_WAVE)}")
    A(f"v_min_u32 {v(V_FO)}, 11, v0")
    A(f"s_mul_i32 {s(T)}, {s(S_WAVE)}, 12")
    A(f"s_add_u32 {s(T)}, {s(T)}, {C_G}")
    A(f"v_add_lshl_u32 {v(V_FO)}, {v(V_FO)}, {s(T)}, 2")
    A(f"v_and_b32 {v(V_T)}, 15, v0")
    A(f"v_lshrrev_b32 {v(V_SAD)}, 5, v0")
    A(f"v_lshlrev_b32 {v(V_SAD)}, 7, {v(V_SAD)}")
    A(f"v_lshl_add_u32 {v(V_SAD)}, {v(V_T)}, 3, {v(V_SAD)}")
    A(f"v_mul_u32_u24 {v(V_OA)}, 1280, {v(V_T)}")
    A(f"v_lshrrev_b32 {v(V_T)}, 4, v0")
    A(f"v_lshl_add_u32 {v(V_OA)}, {v(V_T)}, 3, {v(V_OA)}")
    A(f"s_lshl_b32 {s(S_OO)}, {s(S_J)}, 6")
    A(f"s_mul_i32 {s(S_LW)}, {s(S_WAVE)}, 12288")
    A(f"s_mul_i32 {s(S_G0)}, {s(S_L)}, {4 * GSEG}")
    A(f"s_lshl1_add_u32 {s(S_G0)}, {s(S_LW)}, {s(S_G0)}")
    A(f"s_add_u32 {s(S_G0)}, {s(S_G0)}, {GB}")
    A(f"s_lshl_b32 {s(T)}, {s(S_J)}, 11")
    A(f"s_mul_i32 {s(S_X10)}, {s(S_L)}, {4 * XSEGS}")
    A(f"s_add_u32 {s(S_X10)}, {s(S_X10)}, {s(T)}")
    A(f"s_add_u32 {s(S_X10)}, {s(S_X10)}, {X1B}")
    A(f"s_mul_i32 {s(S_XM)}, {s(S_L)}, {64 * XSEGS}")
    A(f"s_add_u32 {s(S_XM)}, {s(S_XM)}, {s(T)}")
    A(f"s_add_u32 {s(S_XM)}, {s(S_XM)}, {XM}")
    A(f"s_add_u32 {s(S_XO)}, {s(T)}, {XIN + 64 * XSEGS}")
    A(f"s_lshl_b32 {s(S_CR)}, {s(S_L)}, 15")
    A(f"s_add_u32 {s(S_CR)}, {s(S_CR)}, {flag_row(F_H)}")
    A(f"s_lshl2_add_u32 {s(S_CA)}, {s(S_J)}, {s(S_CR)}")
    A(f"s_add_u32 {s(S_CA)}, {s(S_CA)}, {4 * C_W4}")
    A(f"s_lshl_b32 {s(S_PF)}, {s(S_J)}, 2")
    A(f"s_add_u32 {s(S_PF)}, {s(S_PF)}, {flag_row(F_XIN, 1) - 512}")
    A(f"s_mov_b64 {s(S_MF, 2)}, 0")
    make_srd(A, SRD_O, P_OUT, 2048 * 1280)
    init_barrier_arrive(A, V_T)
    late_start(A, cfg, nwg, V_T)
    make_srd(A, SRD_W, P_W4, 1536 * 1280)
    WLoader(A, V_T, T + 3).run(S_OO, 1280, 2, 48, wl, False)
    A("s_barrier")
    if not cfg.wlate:
        init_barrier_wait(A, V_T, nwg, cfg)

    def dma(tt, src, t):
        return [f"s_add_u32 m0, {s(S_LW)}, {tt * 49152 + j * 1024}\ns_add_u32 {s(t)}, {s(src)}, {j * 2048 + tt * 1024}\n"
                f"buffer_load_dwordx4 {v(V_L16)}, {WS}, {s(t)} offen sc1 lds" for j in range(12)]
    smp = f"buffer_load_dword {v(V_FV)}, {v(V_FO)}, {WS}, {s(S_CR)} offen sc1"

    def check(B=A):
        B(f"v_cmp_ge_i32 vcc, {s(S_NS)}, {v(V_FV)}")
    A(f"s_mov_b32 {s(S_S)}, 0")
    A(f"s_mov_b32 {s(S_NS)}, 0")
    A(f"s_mov_b32 {s(S_NG)}, {s(S_G0)}")
    stamp = Stamp(A, cfg, S_S, V_STP, cfg.t0)
    stamp.init()
    for sx, cond in (("S0", None), ("S1", None), ("F1", None)):
        if sx[0] == "S" and not cfg.slow:
            continue
        A(f"s_lshl1_add_u32 {s(T)}, {s(S_MODE)}, {s(S_L)}" if cfg.slow else f"s_mov_b32 {s(T)}, {s(S_L)}")
        A(f"s_cmp_eq_u32 {s(T)}, {(2 if sx[0] == 'S' else 0) + int(sx[1])}")
        A(f"s_cbranch_scc1 W4_WAIT{sx}")

    def body(sx, LS, layer):
        lg = Cnt(A, "lgkmcnt", 15)
        vm = Cnt(A, "vmcnt", 60)
        A.label("W4_WAIT" + sx)
        spin_until(A, [smp], check, cfg.wsl)
        for x in dma(0, S_NG, T + 5):
            A(x)
        A("s_waitcnt vmcnt(0)")
        A.label("W4_LOOP" + sx)
        fine = Fine(A, cfg)
        fine()
        A("s_barrier")
        fine()
        stamp(0)

        def rd(n):
            lg.issue(f"ds_read_b128 {v(V_FR + (n % 8) * 4, 4)}, {v(V_XB if n >= 48 else V_L16)} offset:{(n % 48) * 1024}", ("x", n))
        for n in range(4):
            rd(n)
        A(f"s_mov_b32 {s(S_G)}, {s(S_NG)}")
        A(f"s_and_b32 {s(T)}, {s(S_S)}, 3")
        A(f"s_mul_i32 {s(S_X1)}, {s(T)}, {XSEGS}")
        A(f"s_add_u32 {s(S_X1)}, {s(S_X1)}, {s(S_X10)}")
        A(f"s_add_u32 {s(S_NS)}, {s(S_S)}, 1")
        A(f"s_and_b32 {s(T)}, {s(S_NS)}, 3")
        A(f"s_mul_i32 {s(S_NG)}, {s(T)}, {GSEG}")
        A(f"s_add_u32 {s(S_NG)}, {s(S_NG)}, {s(S_G0)}")
        ops = []
        for n in range(96):
            for e in range(2):
                ac = v(V_ACC + 8 * (n // 48) + 4 * e, 4)
                o = dict(fmt=f"{MF16} {ac}, {{W}}, {v(V_FR + (n % 8) * 4, 4)}, {'0' if n % 48 == 0 else ac}", w=wl(e, n % 48), need=[("x", n | 1 if n > 3 else n)], post=[])
                if n < 3:
                    o["post"].append(lambda k=4 + 2 * n + e: rd(k))
                elif e == 0 and n + 7 < 96:
                    o["post"].append(lambda n=n: rd(n + 7))
                ops.append(o)
        st = Stream(A, lg, 0, 1, 0, 4)
        fl = []
        for k, x in enumerate(dma(1, S_G, T + 5)):
            ops[7 + 4 * k]["post"].append(lambda x=x: vm.issue(x))
        for k in range(4):
            ops[55 + 2 * k]["post"].append(lambda k=k: vm.issue(f"buffer_load_dwordx4 {v(V_XX + 4 * k, 4)}, {v(V_L16)}, {WS}, {s((S_X1, S_XM)[k & 1])} offen offset:{(k >> 1) * 1024} sc1"))

        def resid(B, tt):
            unpack(B, V_XU + 8 * tt, V_XX + 8 * tt, 4)
            for i in range(4):
                B(f"v_lshlrev_b32 {v(V_T)}, 16, {v(V_XX + 8 * tt + 4 + i)}")
                B(f"v_and_b32 {v(V_T + 1)}, 0xffff0000, {v(V_XX + 8 * tt + 4 + i)}")
                B(f"v_add_f32 {v(V_XU + 8 * tt + 2 * i)}, {v(V_XU + 8 * tt + 2 * i)}, {v(V_T)}")
                B(f"v_add_f32 {v(V_XU + 8 * tt + 2 * i + 1)}, {v(V_XU + 8 * tt + 2 * i + 1)}, {v(V_T + 1)}")

        def prev_flag():
            A("s_waitcnt vmcnt(0)")
            vm.q = []
            if layer == 0:
                flag_store(A, V_ONE, V_L16, S_PF, mask=S_MF)

        def midbar():
            prev_flag()
            cnt_store(A, V_T + 7, V_L16, S_NS, S_CA, LS)
            A("s_barrier")
            fl.extend(capture(lambda B: resid(B, 0)) + capture(lambda B: resid(B, 1)))
        ops[81]["post"].insert(0, midbar)

        def epi(B, tt):
            X, P = V_ACC + 8 * tt, V_PK + 4 * tt
            for i in range(8):
                B(f"v_add_f32 {v(X + i)}, {v(X + i)}, {v(V_XU + 8 * tt + i)}")
            if layer == 1:
                for i in range(4):
                    B(f"v_cvt_pk_bf16_f32 {v(P + i)}, {v(X + 2 * i)}, {v(X + 2 * i + 1)}")
                for h in range(2):
                    B(lambda h=h: vm.issue(f"buffer_store_dwordx2 {v(P + 2 * h, 2)}, {v(V_OA)}, {s(SRD_O, 4)}, {s(S_OO)} offen offset:{32 * h}"))
                B(f"s_add_u32 {s(S_OO)}, {s(S_OO)}, {16 * 1280}")
                return
            for i in range(0, 8, 2):
                rnd2(B, P + i // 2, X + i, X + i + 1)
            if tt == 1:
                for k in range(2):
                    B(lambda k=k: vm.issue(f"buffer_store_dwordx4 {v(V_PK + 4 * k, 4)}, {v(V_L16)}, {WS}, {s(S_XO)} offen offset:{k * 1024} sc1"))
            stats_lane(B, [X + i for i in range(8)], V_S2 + 2 * tt)
            if tt == 1:
                t = V_S2
                B(f"v_permlane32_swap_b32 {v(t)}, {v(t + 2)}")
                B(f"v_permlane32_swap_b32 {v(t + 1)}, {v(t + 3)}")
                B(f"s_mul_i32 {s(T)}, {s(S_J)}, {2048 - 256}")
                B(f"s_sub_u32 {s(T)}, {s(S_XO)}, {s(T)}")
                B(f"v_pk_add_f32 {v(t, 2)}, {v(t, 2)}, {v(t + 2, 2)}")
                B(f"v_mov_b64 {v(t + 2, 2)}, {v(t, 2)}")
                B(f"s_add_u32 {s(T)}, {s(T)}, 40960")
                B(f"s_add_u32 {s(S_XO)}, {s(S_XO)}, {XSEGS}")
                B(f"v_permlane16_swap_b32 {v(t)}, {v(t + 2)}")
                B(f"v_permlane16_swap_b32 {v(t + 1)}, {v(t + 3)}")
                B(f"v_pk_add_f32 {v(t, 2)}, {v(t, 2)}, {v(t + 2, 2)}")
                B(lambda: vm.issue(f"buffer_store_dwordx2 {v(t, 2)}, {v(V_SAD)}, {WS}, {s(T)} offen sc1"))
        ops[98]["post"].append(lambda: fl.extend(capture(lambda B: epi(B, 0))))
        D = cfg.w4d
        ops[D - cfg.w4s]["post"].append(lambda: vm.issue(smp, "fv"))

        def dec1():
            vm.wait("fv")
            A("s_barrier")
            fl[0:0] = capture(check) + [f"s_cmp_lg_u64 vcc, 0\ns_cselect_b32 {s(S_DEF)}, {OOR}, 0", f"s_or_b32 {s(T + 6)}, {s(S_NG)}, {s(S_DEF)}"]
        ops[D]["post"].insert(0, dec1)
        dq = dma(0, T + 6, T + 5)

        def nextdma():
            assert not [x for x in fl if not callable(x) and x.startswith("s_or")]
            if dq:
                vm.issue(dq.pop(0), "dma")
        for k in range(D + 5, 192, 4):
            ops[k]["post"].append(nextdma)
        for k in (0, 40, 80, 82, 96, D - 1, D + 1, 191):
            ops[k]["post"].insert(0, fine)
        st.run(ops, fl)
        stamp(1)
        while dq:
            nextdma()
        for x in fl + capture(lambda B: epi(B, 1)):
            x() if callable(x) else A(x)
        stamp(2)
        A(f"s_add_u32 {s(S_PF)}, {s(S_PF)}, 512")
        A(f"s_mov_b64 {s(S_MF, 2)}, -1")
        A(f"s_add_u32 {s(S_XM)}, {s(S_XM)}, {XSEGS}")
        A(f"s_mov_b32 {s(S_S)}, {s(S_NS)}")
        A(f"s_cmp_eq_u32 {s(S_S)}, 64")
        A(f"s_cselect_b32 {s(S_DEF)}, 1, {s(S_DEF)}")
        fine()
        vm.wait("dma")
        fine()
        fine.dump(S_S, cfg.t0, V_T)
        A(f"s_cmp_eq_u32 {s(S_DEF)}, 0")
        A("s_cbranch_scc1 W4_LOOP" + sx)
        prev_flag()
        A(f"s_mov_b64 {s(S_MF, 2)}, 0")
        A(f"s_cmp_lt_u32 {s(S_S)}, 64")
        A("s_cbranch_scc1 W4_WAIT" + sx)
        A("s_branch W4_END")
    body("F0", cfg.LS, 0)
    body("F1", cfg.LS, 1)
    if cfg.slow:
        body("S0", " sc1", 0)
        body("S1", " sc1", 1)
    A.label("W4_END")
    stamp.dump(V_T)
    if cfg.timing:
        A(f"s_cmp_eq_u32 {s(S_L)}, 0")
        A("s_cbranch_scc1 W4_X")
        A("s_memrealtime s[98:99]")
        A("s_waitcnt lgkmcnt(0)")
        A(f"v_mov_b32 {v(V_T)}, s98")
        A(f"v_mov_b32 {v(V_T + 1)}, 80")
        A("s_mov_b64 exec, 1")
        A(f"buffer_store_dword {v(V_T)}, {v(V_T + 1)}, {s(SRD_DBG, 4)}, 0 offen")
        A.label("W4_X")
    A("s_endpgm")


GENS = dict(W1=gen_w123(1), W2=gen_w123(2), W3=gen_w123(3), W4=gen_w4)
```

```python
from common2 import *
import chain2

PLACE = [
    [("CQ", 8), ("CV", 8), ("OW", 8), ("PO", 8)],
    [("CQ", 8), ("CV", 8), ("OW", 8), ("PO", 8)],
    [("CQ", 8), ("CV", 8), ("OW", 8), ("PO", 8)],
    [("CQ", 8), ("CV", 8), ("OW", 8), ("PO", 8)],
    [("P1B", 32)],
    [("P1B", 16), ("P1A", 16)],
    [("P1A", 32)],
    [("W1", 5), ("W2", 5), ("W3", 12), ("W4", 10)],
]
ROLE_BITS = ["CQ", "CV", "OW", "PO", "P1", "W1", "W2", "W3", "W4"]

DOC = """; ---------------------------------------------------------------------------------------------
; ---------------------------------------------------------------------------------------------
"""


def gen(cfg):
    A = Asm()
    nwg = 256
    CFG[0] = cfg
    if cfg.mode == "chain":
        cfg.off = 0x1f0
    active = [r for i, r in enumerate(ROLE_BITS) if not (cfg.off >> i) & 1]
    K = NAME + "_kernel"
    head = open("/code/" + NAME + ".s.ref").read().split("\n")
    hdr = [l for l in head if l.startswith(";") and "@launch" not in l and "Override" not in l and "grid=ceil" not in l]
    out = "\n".join(hdr) + f"\n; @launch grid=({nwg},1,1) block=(256,1,1) lds=163840\n"
    out += '.amdgcn_target "amdgcn-amd-amdhsa--gfx950"\n.text\n'
    out += DOC
    out += f".globl {K}\n.p2align 8\n.type {K},@function\n{K}:\n"
    A(f"s_cmp_ge_u32 s2, {nwg}")
    A("s_cbranch_scc1 EXIT")
    A(f"s_load_dwordx16 {s(16, 16)}, s[0:1], 0")
    A(f"s_load_dwordx8 {s(32, 8)}, s[0:1], 64")
    A(f"s_load_dwordx4 {s(40, 4)}, s[0:1], 96")
    A(f"s_load_dwordx2 {s(44, 2)}, s[0:1], 112")
    A("v_lshrrev_b32 v1, 6, v0")
    A("v_and_b32 v0, 63, v0")
    A(f"v_readfirstlane_b32 {s(S_WAVE)}, v1")
    A(f"s_mov_b32 {s(S_SPIN)}, {cfg.spin}")
    A(f"s_mov_b32 {s(S_MODE)}, 0")
    A("s_getreg_b32 s4, hwreg(HW_REG_XCC_ID)")
    A("s_and_b32 s4, s4, 7")
    A("s_waitcnt lgkmcnt(0)")
    make_srd(A, SRD_WS, P_WS, cfg.wsbytes)
    make_srd(A, SRD_DBG, P_DBG, 256)
    A("v_lshlrev_b32 v1, 3, v0")
    A("v_mov_b64 v[4:5], 0")
    A("s_lshl_b32 s5, s2, 2")
    A(f"s_add_u32 s5, s5, {s(S_WAVE)}")
    A("s_lshl_b32 s5, s5, 9")
    if not cfg.keepflags:
        A(f"buffer_store_dwordx2 v[4:5], v1, {WS}, s5 offen sc1")
    if cfg.near:
        A("s_cmp_ge_u32 s4, 4")
        A("s_cbranch_scc1 VOTE_DONE")
        A(f"s_cmp_eq_u32 {s(S_WAVE)}, 0")
        A("s_cbranch_scc1 VOTE_DONE")
        A("s_and_b32 s52, s2, 56")
        A("s_cbranch_scc1 VOTE_DONE")
        A("s_mov_b64 exec, 1")
        A("v_mov_b32 v12, 0")
        A("s_and_b32 s53, s2, 7")
        A("s_lshl_b32 s53, s53, 10")
        A("s_lshr_b32 s52, s2, 6")
        A("s_lshl_b32 s52, s52, 14")
        A("s_add_u32 s53, s53, s52")
        A(f"s_lshl_b32 s52, {s(S_WAVE)}, 21")
        A("s_add_u32 s53, s53, s52")
        A(f"s_add_u32 s53, s53, {XP - 0x200000 + PROBE}")
        A("s_add_u32 s59, s53, 0x2000")
        A("s_mov_b32 s50, -1")
        A("s_mov_b32 s51, -1")
        A("s_mov_b32 s52, 0")
        A.label("VOTE_LOOP")
        A(f"buffer_store_dword v12, v12, {WS}, s53 offen sc1")
        A(f"buffer_store_dword v12, v12, {WS}, s59 offen sc1")
        A("s_waitcnt vmcnt(0)")
        for par in range(2):
            A("s_memtime s[54:55]")
            A("s_waitcnt lgkmcnt(0)")
            A(f"buffer_load_dword v13, v12, {WS}, s{59 if par else 53} offen sc1")
            A("s_waitcnt vmcnt(0)")
            A("s_memtime s[56:57]")
            A("s_waitcnt lgkmcnt(0)")
            A(f"s_sub_u32 s56, s56, s54")
            A(f"s_min_u32 s{50 + par}, s{50 + par}, s56")
        A("s_add_u32 s52, s52, 1")
        A("s_cmp_lt_u32 s52, 2")
        A("s_cbranch_scc1 VOTE_LOOP")
        A("s_cmp_lt_u32 s51, s50")
        A("s_cselect_b32 s52, 1, -1")
        A("v_mov_b32 v13, s52")
        A(f"s_lshl2_add_u32 s52, {s(S_WAVE)}, 188")
        A("v_mov_b32 v12, s52")
        A(f"buffer_atomic_add v13, v12, {s(SRD_DBG, 4)}, 0 offen sc1")
        A("s_mov_b64 exec, -1")
        A.label("VOTE_DONE")
    A("v_mov_b32 v2, 0")
    A(f"s_cmp_lg_u32 {s(S_WAVE)}, 0")
    A("s_cbranch_scc1 TK_DONE")
    A("s_mov_b64 exec, 1")
    A("v_mov_b32 v1, 1")
    A("s_lshl_b32 s5, s4, 2")
    A("v_mov_b32 v3, s5")
    A(f"buffer_atomic_add v1, v3, {s(SRD_DBG, 4)}, 0 offen offset:32 sc0 sc1")
    A("s_waitcnt vmcnt(0)")
    A("v_readfirstlane_b32 s5, v1")
    A("s_lshl_b32 s6, s4, 5")
    A("s_add_u32 s6, s6, s5")
    A("s_cmp_lt_u32 s5, 32")
    A("s_cselect_b32 s6, s6, 999")
    A("v_mov_b32 v1, s6")
    A("ds_write_b32 v2, v1")
    A("s_mov_b64 exec, -1")
    A("s_waitcnt lgkmcnt(0)")
    A.label("TK_DONE")
    A("s_barrier")
    A("ds_read_b32 v1, v2")
    A("s_waitcnt lgkmcnt(0)")
    A(f"v_readfirstlane_b32 {s(S_ROLEG)}, v1")
    A("s_barrier")
    if cfg.timing:
        A("s_memrealtime s[98:99]")
        A("s_waitcnt lgkmcnt(0)")
        A("v_mov_b32 v1, s98")
        A("v_mov_b32 v2, 12")
        A(f"s_cmp_lg_u32 {s(S_ROLEG)}, 0")
        A("s_cbranch_scc1 DISPATCH")
        A(f"buffer_store_dword v1, v2, {s(SRD_DBG, 4)}, 0 offen")
    A.label("DISPATCH")
    if cfg.timing:
        A(f"s_mov_b32 {s(S_GID)}, {s(S_ROLEG)}")
    pos = 0
    cnt = {"P1B": 48}
    for xcd in PLACE:
        assert sum(n for _, n in xcd) == 32
        for name, n in xcd:
            b = cnt.get(name, 0)
            cnt[name] = b + n
            role = name[:2]
            A(f"s_sub_u32 {s(S_ROLE)}, {s(S_ROLEG)}, {pos - b}" if pos >= b else f"s_add_u32 {s(S_ROLE)}, {s(S_ROLEG)}, {b - pos}")
            A(f"s_cmp_lt_u32 {s(S_ROLEG)}, {pos + n}")
            A(f"s_cbranch_scc1 GO_{role if role in active else 'SPARE'}")
            pos += n
    A.label("GO_SPARE")
    init_barrier_arrive(A, 12)
    init_barrier_wait(A, 12, nwg, cfg)
    A.label("EXIT")
    A("s_endpgm")
    A.label("ABORT")
    A("s_mov_b64 exec, 1")
    A("v_mov_b32 v1, s2")
    A("v_add_u32 v1, 0x10000, v1")
    A("v_mov_b32 v2, 8")
    A(f"buffer_store_dword v1, v2, {s(SRD_DBG, 4)}, 0 offen")
    A("s_endpgm")
    gens = dict(CQ=chain2.gen_cq, CV=chain2.gen_cv, OW=chain2.gen_ow)
    import bulk2
    gens.update(bulk2.GENS)
    import mlp2
    gens.update(mlp2.GENS)
    for r in active:
        A.label("GO_" + r)
        gens[r](A, cfg, nwg)
        A.emit_ool()
    out += A.render()
    out += f""".section .rodata,"a"
.p2align 6
.amdhsa_kernel {K}
  .amdhsa_next_free_vgpr 512
  .amdhsa_next_free_sgpr 102
  .amdhsa_accum_offset 256
  .amdhsa_group_segment_fixed_size 0
  .amdhsa_kernarg_size 120
  .amdhsa_user_sgpr_count 2
  .amdhsa_user_sgpr_kernarg_segment_ptr 1
  .amdhsa_system_sgpr_workgroup_id_x 1
.end_amdhsa_kernel
"""
    return out, A.count()


def make(mode, kw):
    if mode == "chain":
        kw.setdefault("timing", 1)
        return Cfg(mode="chain", lstride=LSTRIDE, keepflags=1, **kw)
    kw.setdefault("keepflags", 0)
    return Cfg(mode=mode, **kw)


if __name__ == "__main__":
    mode = sys.argv[1] if len(sys.argv) > 1 else "full"
    outp = sys.argv[2] if len(sys.argv) > 2 else "/code/" + NAME + ".s"
    kw = {}
    for arg in sys.argv[3:]:
        k, val = arg.split("=")
        kw[k] = int(val)
    txt, n = gen(make(mode, kw))
    open(outp, "w").write(txt)
    print("instructions:", n, "bytes:", len(txt))
```

```python
import sys
from asmlib import Asm, v, a, s
NAME = "interleave_layers__memory_aug_recurrent_mem_tr__mixer_s_mlp__prompt"
WS = "s[8:11]"
OUT = 250 << 20
TAIL = """.section .rodata,"a"
.p2align 6
.amdhsa_kernel {K}
  .amdhsa_next_free_vgpr 512
  .amdhsa_next_free_sgpr 102
  .amdhsa_accum_offset 256
  .amdhsa_group_segment_fixed_size 0
  .amdhsa_kernarg_size 120
  .amdhsa_user_sgpr_count 2
  .amdhsa_user_sgpr_kernarg_segment_ptr 1
  .amdhsa_system_sgpr_workgroup_id_x 1
.end_amdhsa_kernel
"""

def gen(P):
    A = Asm()
    K = NAME + "_kernel"
    out = f"; @launch grid=(256,1,1) block=(256,1,1) lds=163840\n.amdgcn_target \"amdgcn-amd-amdhsa--gfx950\"\n.text\n.globl {K}\n.p2align 8\n.type {K},@function\n{K}:\n"
    A("s_load_dwordx2 s[4:5], s[0:1], 112")
    A("v_lshrrev_b32 v1, 6, v0")
    A("v_and_b32 v0, 63, v0")
    A("v_readfirstlane_b32 s20, v1")
    A("s_waitcnt lgkmcnt(0)")
    A("s_mov_b32 s8, s4\ns_mov_b32 s9, s5\ns_mov_b32 s10, 0x10000000\ns_mov_b32 s11, 0x20000")
    A(f"s_cmp_ge_u32 s2, {P['ncu'] * 8}")
    A("s_cbranch_scc1 END")
    A(f"s_cmp_ge_u32 s20, {P['nw']}")
    A("s_cbranch_scc1 END")
    w = P["w"]
    run = P["run"]
    sh = run.bit_length() - 1
    A(f"v_lshrrev_b32 v1, {sh}, v0")
    A(f"v_mul_u32_u24 v1, {P['rstride']}, v1")
    A(f"v_and_b32 v2, {run - 1}, v0")
    A(f"v_mul_u32_u24 v2, {w}, v2")
    A("v_add_u32 v1, v1, v2")
    A("s_lshl_b32 s21, s2, 2")
    A("s_add_u32 s21, s21, s20")
    A(f"s_mul_i32 s21, s21, {P['wstride']}")
    A("s_lshl_b32 s24, s20, 15")
    A("s_mov_b32 s22, 0")
    A("s_mov_b32 s40, 0\ns_mov_b32 s41, 0")
    sfx = {4: "dword", 8: "dwordx2", 16: "dwordx4"}[w]
    A.label("LOOP")
    A("s_barrier")
    if P["pre"]:
        A(f"s_mul_i32 s23, s22, {P['itstride']}")
        A("s_add_u32 s23, s23, s21")
        for i in range(P["n"]):
            A(f"buffer_store_{sfx} {v(16, w // 4)}, v1, {WS}, s23 offen{('', '', ' sc1')[P['pre']]}")
            A(f"s_add_u32 s23, s23, {P['istride']}")
        A("s_waitcnt vmcnt(0)")
        if P["dly"]:
            A(f"s_sleep {P['dly']}")
    A("s_memtime s[30:31]")
    A("s_waitcnt lgkmcnt(0)")
    A(f"s_mul_i32 s23, s22, {P['itstride']}")
    A("s_add_u32 s23, s23, s21")
    for i in range(P["n"]):
        fl = P["fl"]
        fl = {0: "", 1: " sc1", 2: " nt", 3: " sc0 sc1", 4: " sc0"}[fl]
        if P["op"] == 0:
            A(f"buffer_store_{sfx} {v(16 + 4 * (i % 8), w // 4)}, v1, {WS}, s23 offen{fl}")
        elif P["op"] == 1:
            A(f"buffer_load_{sfx} {v(64 + 4 * (i % 40), w // 4)}, v1, {WS}, s23 offen{fl}")
        else:
            A(f"s_add_u32 m0, s24, {i * 1024}")
            A(f"buffer_load_{sfx} v1, {WS}, s23 offen{fl} lds")
        A(f"s_add_u32 s23, s23, {P['istride']}")
        for j in range(P["mf"]):
            A(f"v_mfma_f32_16x16x32_bf16 {v(200 + 4 * (j % 3), 4)}, {a((j * 4) % 256, 4)}, v[220:223], {v(200 + 4 * (j % 3), 4)}")
    A("s_memtime s[34:35]")
    A("s_waitcnt vmcnt(0) lgkmcnt(0)")
    A("s_memtime s[32:33]")
    A("s_waitcnt lgkmcnt(0)")
    A("s_sub_u32 s32, s32, s30")
    A("s_sub_u32 s34, s34, s30")
    A("s_cmp_lt_u32 s22, 10")
    A("s_cselect_b32 s32, 0, s32")
    A("s_cselect_b32 s34, 0, s34")
    A("s_add_u32 s40, s40, s32")
    A("s_add_u32 s41, s41, s34")
    A("s_sleep 20")
    A("s_add_u32 s22, s22, 1")
    A("s_cmp_lt_u32 s22, 110")
    A("s_cbranch_scc1 LOOP")
    A("s_lshl_b32 s21, s2, 2")
    A("s_add_u32 s21, s21, s20")
    A("s_lshl_b32 s21, s21, 3")
    A(f"s_add_u32 s21, s21, {OUT}")
    A("v_mov_b32 v4, s40\nv_mov_b32 v5, s41\nv_mov_b32 v1, 0")
    A("s_mov_b64 exec, 1")
    A(f"buffer_store_dwordx2 v[4:5], v1, {WS}, s21 offen")
    A.label("END")
    A("s_endpgm")
    return out + A.render() + TAIL.format(K=K)

BASE = dict(op=0, n=8, nw=4, ncu=1, w=16, run=64, rstride=0, istride=1024, wstride=65536, fl=0, mf=0, itstride=0, pre=0, dly=0)
if __name__ == "__main__":
    sys.path.insert(0, "cdna_kernels")
    from build import build
    cases = []
    for line in open(sys.argv[1]):
        line = line.split("#")[0].strip()
        if line:
            cases.append(dict((k, int(x)) for k, x in (t.split("=") for t in line.split() if "=" in t)))
    import os
    if not os.path.exists("/dev/kfd"):
        for c in cases:
            open("mb.s", "w").write(gen({**BASE, **c}))
            build("mb.s", "mb.co", check=True)
        print("built", len(cases))
        sys.exit(0)
    import cdna_launch as cl
    import torch, numpy as np
    ws = torch.zeros(1 << 28, dtype=torch.uint8, device='cuda')
    ka = cl.pack_ptr_kernargs([ws.data_ptr()] * 15)
    for i, c in enumerate(cases):
        P = {**BASE, **c}
        open("mb.s", "w").write(gen(P))
        build("mb.s", f"mb{i}.co", check=False)
        k = cl.AsmKernel(f"mb{i}.co", NAME + "_kernel", check=False)
        ws[:200 << 20].zero_(); ws[OUT:OUT + 65536].zero_()
        k.launch((256, 1, 1), (256, 1, 1), ka, 163840); torch.cuda.synchronize()
        r = ws[OUT:OUT + 8192].view(torch.int32).reshape(256, 4, 2).cpu().numpy().astype(np.float64)[:P["ncu"] * 8, :P["nw"]] / 100
        print("%-70s done mean %.0f max %.0f | issue mean %.0f max %.0f" % (" ".join(f"{k_}={x}" for k_, x in c.items()), r[..., 0].mean(), r[..., 0].max(1).mean(), r[..., 1].mean(), r[..., 1].max(1).mean()), flush=True)
```
